```python
import torch

def _softmax(x, axis=-1):
    return torch.softmax(x, dim=axis)
def _gelu(x):
    return torch.nn.functional.gelu(x, approximate="tanh")
def _silu(x):
    return torch.nn.functional.silu(x)
def _sigmoid(x):
    return torch.sigmoid(x)
def _layernorm(x, axis=-1, eps=1e-5):
    m = x.mean(dim=axis, keepdim=True)
    v = x.var(dim=axis, keepdim=True, unbiased=False)
    return (x - m) / torch.sqrt(v + eps)
def _scatter_add(tgt, idx, src, axis=0):
    return tgt.clone().index_add_(axis, idx, src)
def _segment_sum(src, seg, n):
    out = torch.zeros((n,) + src.shape[1:], dtype=src.dtype)
    return out.index_add_(0, seg, src)
def _pad(x, pw):
    flat = tuple(v for pair in reversed(pw) for v in pair)
    return torch.nn.functional.pad(x, flat)

kernel_name = 'standalone__dense_activation_relu__prompt'

def setup_inputs():

    _w = (lambda a: (lambda t: t.to(torch.bfloat16) if t.is_floating_point() else t)(torch.as_tensor(a)))
    B, S, D, Dff = 1, 2048, 1024, 3584
    return {
        "x": _w((lambda *s: torch.randn(*s, dtype=torch.bfloat16) * 0.05)(B, S, D)),
        "w1": _w((lambda *s: torch.randn(*s, dtype=torch.bfloat16) * 0.05)(D, Dff)),
        "w2": _w((lambda *s: torch.randn(*s, dtype=torch.bfloat16) * 0.05)(Dff, D)),
    }

def reference(x, w1, w2):
    h = torch.einsum("bsd,df->bsf", x, w1)
    zero = torch.zeros_like(h)
    h = torch.maximum(h, zero)
    return torch.einsum("bsf,fd->bsd", h, w2)
```

```python
import sys

HDR = """; Kernarg layout for this problem (48 bytes, ptrs only, base s[0:1]):
"""

class Asm:
    def __init__(self):
        self.lines = []
    def __call__(self, s):
        self.lines.append("    " + s)
    def label(self, s):
        self.lines.append(s + ":")
    def raw(self, s):
        self.lines.append(s)
    def text(self):
        return "\n".join(self.lines) + "\n"

def vr(b, n):
    return f"v[{b}:{b+n-1}]" if n > 1 else f"v{b}"

X_BYTES = 2048 * 1024 * 2
W_BYTES = 1024 * 3584 * 2
H_BYTES = 2048 * 3584 * 2
O_BYTES = 2048 * 1024 * 2

def srd(a, d, lo, hi, nbytes):
    a(f"s_mov_b32 s{d}, s{lo}")
    a(f"s_and_b32 s{d+1}, s{hi}, 0xffff")
    a(f"s_mov_b32 s{d+2}, {nbytes}")
    a(f"s_mov_b32 s{d+3}, 0x20000")


STAMP_OFF = 64 << 20
def stamp_start(a, opt):
    if not opt.get("stamp"): return
    a("s_memrealtime s[40:41]")
    a("s_memtime s[42:43]")
    a("s_load_dwordx2 s[44:45], s[0:1], 40")
    for i in range(16): a(f"s_mov_b32 s{64+i}, 0")

def mark(a, opt, i):
    if not opt.get("stamp"): return
    a(f"s_memtime s[{64+2*i}:{65+2*i}]")

def stamp_end(a, opt, kidx, wave_sreg="s12", vt=100):
    if not opt.get("stamp"): return
    lab = f"Lst_skip{kidx}"
    a("s_waitcnt vmcnt(0)")
    a("s_memrealtime s[46:47]")
    a("s_memtime s[48:49]")
    a("s_waitcnt lgkmcnt(0)")
    a("s_mov_b32 s52, s44")
    a("s_and_b32 s53, s45, 0xffff")
    a("s_mov_b32 s54, 0x10000000")
    a("s_mov_b32 s55, 0x20000")
    a("s_sub_u32 s51, s48, s42")
    a("s_getreg_b32 s56, hwreg(HW_REG_XCC_ID)")
    a(f"s_lshl_b32 s57, s2, 4")
    a(f"s_add_u32 s57, s57, {STAMP_OFF + kidx*4096}")
    a(f"v_mov_b32 v{vt}, s40")
    a(f"v_mov_b32 v{vt+1}, s46")
    a(f"v_mov_b32 v{vt+2}, s51")
    a(f"v_mov_b32 v{vt+3}, s56")
    a(f"v_mov_b32 v{vt+4}, s57")
    a(f"s_cmp_lg_u32 {wave_sreg}, 0")
    a(f"s_cbranch_scc1 {lab}")
    a("s_mov_b64 exec, 1")
    a(f"buffer_store_dwordx4 v[{vt}:{vt+3}], v{vt+4}, s[52:55], 0 offen")
    a(f"s_lshl_b32 s57, s2, 5")
    a(f"s_add_u32 s57, s57, {STAMP_OFF + 65536 + kidx*8192}")
    a(f"v_mov_b32 v{vt+4}, s57")
    for i in range(8):
        a(f"s_sub_u32 s58, s{64+2*i}, s42")
        a(f"v_mov_b32 v{vt+8+i}, s58")
    a(f"buffer_store_dwordx4 v[{vt+8}:{vt+11}], v{vt+4}, s[52:55], 0 offen")
    a(f"buffer_store_dwordx4 v[{vt+12}:{vt+15}], v{vt+4}, s[52:55], 0 offen offset:16")
    a("s_mov_b64 exec, -1")
    a.label(lab)

def stamp_kernel(a, nk=2):
    a.raw(".globl stamp_kernel")
    a.raw(".p2align 8")
    a.raw(".type stamp_kernel,@function")
    a.label("stamp_kernel")
    a("s_cmp_ge_u32 s2, 1")
    a("s_cbranch_scc1 Lsk_end")
    a("s_load_dwordx4 s[4:7], s[0:1], 32")
    a("s_waitcnt lgkmcnt(0)")
    srd(a, 8, 4, 5, 256)
    srd(a, 12, 6, 7, 0x10000000)
    a("v_lshlrev_b32 v1, 4, v0")
    a(f"v_add_u32 v1, {STAMP_OFF}, v1")
    a("v_mov_b32 v2, 0")
    for k in range(nk):
        a(f"v_add_u32 v3, {k*4096}, v1")
        a("buffer_load_dwordx4 v[4:7], v3, s[12:15], 0 offen")
        a("s_waitcnt vmcnt(0)")
        a("v_not_b32 v8, v4")
        a("v_sub_u32 v9, v5, v4")
        a("v_not_b32 v10, v5")
        a(f"buffer_atomic_umax v8, v2, s[8:11], 0 offen offset:{k*32+0}")
        a(f"buffer_atomic_umax v4, v2, s[8:11], 0 offen offset:{k*32+4}")
        a(f"buffer_atomic_umax v10, v2, s[8:11], 0 offen offset:{k*32+8}")
        a(f"buffer_atomic_umax v5, v2, s[8:11], 0 offen offset:{k*32+12}")
        a(f"buffer_atomic_umax v6, v2, s[8:11], 0 offen offset:{k*32+16}")
        a(f"buffer_atomic_umax v9, v2, s[8:11], 0 offen offset:{k*32+20}")
        a("s_waitcnt vmcnt(0)")
    a.label("Lsk_end")
    a("s_endpgm")

def interleave(mfmas, others, start=0, per=1):
    out = []
    oi = 0
    for i, m in enumerate(mfmas):
        out.append(m)
        if i >= start:
            for _ in range(per):
                if oi < len(others):
                    out.append(others[oi]); oi += 1
    out.extend(others[oi:])
    return out

ST1 = 45056
def gemm1(a, opt):
    a.raw(".globl gemm1_kernel")
    a.raw(".p2align 8")
    a.raw(".type gemm1_kernel,@function")
    a.label("gemm1_kernel")
    a("s_cmp_ge_u32 s2, 256")
    a("s_cbranch_scc1 L1_end")
    stamp_start(a, opt)
    a("s_load_dwordx4 s[4:7], s[0:1], 0")
    a("s_load_dwordx2 s[8:9], s[0:1], 40")
    a("v_lshrrev_b32 v1, 6, v0")
    a("v_and_b32 v0, 63, v0")
    a("s_and_b32 s10, s2, 7")
    a("v_readfirstlane_b32 s12, v1")
    a("s_lshr_b32 s11, s2, 3")
    a("s_and_b32 s13, s10, 1")
    a("s_lshl_b32 s13, s13, 3")
    a("s_and_b32 s14, s11, 7")
    a("s_add_u32 s13, s13, s14")
    a("s_lshr_b32 s14, s10, 1")
    a("s_lshl_b32 s14, s14, 2")
    a("s_lshr_b32 s15, s11, 3")
    a("s_add_u32 s14, s14, s15")
    a("s_waitcnt lgkmcnt(0)")
    srd(a, 16, 4, 5, X_BYTES)
    srd(a, 20, 6, 7, W_BYTES)
    srd(a, 24, 8, 9, H_BYTES)
    a("s_cmp_ge_u32 s12, 4")
    a("s_cbranch_scc1 L1_prod")
    ACC = 0
    FR = [112, 156]
    VB = 200
    VL = 210
    VT = 211
    VS = 216
    a(f"v_mov_b32 v{VL}, v0")
    a("s_and_b32 s28, s12, 1")
    a("s_lshr_b32 s29, s12, 1")
    a(f"v_and_b32 v{VT}, 15, v{VL}")
    a(f"v_lshrrev_b32 v{VT+1}, 4, v{VL}")
    a(f"v_lshrrev_b32 v{VT+2}, 1, v{VT}")
    a(f"v_xor_b32 v{VT+2}, v{VT+1}, v{VT+2}")
    a(f"v_lshlrev_b32 v{VT+2}, 4, v{VT+2}")
    a(f"v_lshlrev_b32 v{VT+3}, 7, v{VT}")
    a("s_lshl_b32 s30, s28, 13")
    a(f"v_add3_u32 v{VB}, v{VT+2}, v{VT+3}, s30")
    a(f"v_xor_b32 v{VB+1}, 64, v{VB}")
    a(f"v_lshrrev_b32 v{VT+2}, 2, v{VL}")
    a(f"v_and_b32 v{VT+2}, 3, v{VT+2}")
    a(f"v_lshl_add_u32 v{VT+2}, v{VT+1}, 3, v{VT+2}")
    a(f"v_mul_u32_u24 v{VT+2}, 448, v{VT+2}")
    a(f"v_and_b32 v{VT+3}, 3, v{VL}")
    a(f"v_lshl_add_u32 v{VT+2}, v{VT+3}, 3, v{VT+2}")
    a(f"v_add_u32 v{VT+2}, 16384, v{VT+2}")
    a(f"v_and_b32 v{VT+3}, 1, v{VT+1}")
    a(f"v_lshlrev_b32 v{VT+3}, 5, v{VT+3}")
    a("s_lshl_b32 s30, s29, 8")
    a(f"v_add3_u32 v{VB+2}, v{VT+2}, v{VT+3}, s30")
    a(f"v_add_u32 v{VB+3}, s30, v{VT+2}")
    a(f"v_sub_u32 v{VB+3}, v{VB+3}, v{VT+3}")
    a("s_lshl_b32 s30, s29, 5")
    a(f"v_xor_b32 v{VT+3}, s30, v{VT+3}")
    a(f"v_add_u32 v{VT+2}, 192, v{VT+2}")
    a(f"v_add_u32 v{VB+4}, v{VT+2}, v{VT+3}")
    a("s_mul_i32 s30, s13, 917504")
    a("s_lshl_b32 s31, s28, 12")
    a("s_add_u32 s30, s30, s31")
    a("s_mul_i32 s31, s14, 57344")
    a("s_add_u32 s30, s30, s31")
    a("s_lshl_b32 s31, s29, 15")
    a("s_add_u32 s31, s30, s31")
    a(f"v_lshl_add_u32 v{VS}, v{VL}, 4, s31")
    a("s_lshl_b32 s31, s29, 3")
    a("s_add_u32 s31, s31, s30")
    a("s_add_u32 s31, s31, 24576")
    a(f"v_lshl_add_u32 v{VS+1}, v{VL}, 4, s31")
    a("s_mov_b32 s32, 8192")
    a("s_mov_b32 s33, 16384")
    for i in range(5):
        a(f"v_mov_b32 v{VB+5+i}, v{VB+i}")
    for i in range(112):
        a(f"v_mov_b32 v{ACC+i}, 0")
    a("s_mov_b32 s34, 0")
    a("s_mov_b32 s35, 0")
    XA = [VB+5, VB+6]
    WA = [VB+7, VB+8, VB+9]
    def reads(buf, kk):
        r = []
        fb = FR[buf]
        for mi in range(4):
            r.append(f"ds_read_b128 {vr(fb+4*mi,4)}, v{XA[kk]} offset:{mi*2048}")
        for fj in range(7):
            for hh in range(2):
                if fj < 6:
                    areg = WA[fj & 1]; off = fj*32 + (32*kk + 4*hh)*448
                else:
                    areg = WA[2]; off = (32*kk + 4*hh)*448
                r.append(f"ds_read_b64_tr_b16 {vr(fb+16+4*fj+2*hh,2)}, v{areg} offset:{off}")
        return r
    def mfmas(buf):
        m = []
        fb = FR[buf]
        for fj in range(7):
            for mi in range(4):
                acc = ACC + 4*(fj*4+mi)
                m.append(f"v_mfma_f32_16x16x32_bf16 {vr(acc,4)}, {vr(fb+16+4*fj,4)}, {vr(fb+4*mi,4)}, {vr(acc,4)}")
        return m
    adv = ["s_add_u32 s34, s34, %d" % ST1,
           "s_cmp_eq_u32 s34, %d" % (3*ST1),
           "s_cselect_b32 s34, 0, s34"]
    adv += [f"v_add_u32 v{VB+5+i}, s34, v{VB+i}" for i in range(5)]
    mark(a, opt, 0)
    a("s_barrier")
    mark(a, opt, 1)
    for s in reads(0, 0): a(s)
    a("s_waitcnt lgkmcnt(0)")
    a.raw(".p2align 6")
    a.label("L1_loop")
    for s in interleave(mfmas(0), reads(1, 1) + adv): a(s)
    a("s_waitcnt lgkmcnt(0)")
    a("s_barrier")
    for s in interleave(mfmas(1), reads(0, 0) + ["s_add_u32 s35, s35, 1", "s_cmp_lt_u32 s35, 15"]): a(s)
    a("s_waitcnt lgkmcnt(0)")
    a("s_cbranch_scc1 L1_loop")
    mark(a, opt, 2)
    for s in interleave(mfmas(0), reads(1, 1)): a(s)
    a("s_waitcnt lgkmcnt(0)")
    for s in mfmas(1): a(s)
    a("s_nop 7")
    a("s_nop 7")
    mark(a, opt, 3)
    T = FR[0]
    t = 0
    sf = opt.get("h_store_flags", "")
    for mi in range(4):
        for p in range(3):
            tb = T + 4*(t % 16); t += 1
            for h in range(2):
                acc = ACC + 4*((2*p+h)*4 + mi)
                for e in range(4):
                    a(f"v_maximum3_f32 v{acc+e}, v{acc+e}, 0, 0")
                a(f"v_cvt_pk_bf16_f32 v{tb+2*h}, v{acc}, v{acc+1}")
                a(f"v_cvt_pk_bf16_f32 v{tb+2*h+1}, v{acc+2}, v{acc+3}")
            so = ["0", "s32", "s33"][p]
            a(f"buffer_store_dwordx4 {vr(tb,4)}, v{VS}, s[24:27], {so} offen offset:{mi*1024} {sf}")
        tb = T + 4*(t % 16); t += 1
        acc = ACC + 4*(6*4 + mi)
        for e in range(4):
            a(f"v_maximum3_f32 v{acc+e}, v{acc+e}, 0, 0")
        a(f"v_cvt_pk_bf16_f32 v{tb}, v{acc}, v{acc+1}")
        a(f"v_cvt_pk_bf16_f32 v{tb+1}, v{acc+2}, v{acc+3}")
        a(f"buffer_store_dwordx2 {vr(tb,2)}, v{VS+1}, s[24:27], 0 offen offset:{mi*1024} {sf}")
    mark(a, opt, 4)
    stamp_end(a, opt, 0)
    a("s_endpgm")
    a.label("L1_prod")
    a("s_sub_u32 s12, s12, 4")
    a("v_lshrrev_b32 v1, 3, v0")
    a("v_and_b32 v2, 7, v0")
    a("v_lshrrev_b32 v3, 4, v0")
    a("v_xor_b32 v2, v2, v3")
    a("s_lshl_b32 s28, s13, 7")
    a("s_lshl_b32 s29, s12, 5")
    a("s_add_u32 s28, s28, s29")
    a("v_add_u32 v1, s28, v1")
    a("v_lshlrev_b32 v1, 11, v1")
    a("v_lshl_add_u32 v8, v2, 4, v1")
    a("v_xor_b32 v9, 64, v8")
    a("v_add_u32 v9, 16384, v9")
    a("v_add_u32 v10, 32768, v8")
    a("v_add_u32 v11, 32768, v9")
    a("s_mul_i32 s28, s12, %d" % (16*7168))
    a("s_mul_i32 s29, s14, 448")
    a("s_add_u32 s28, s28, s29")
    a("s_mov_b32 s29, 7168")
    for b in range(7):
        a(f"v_add_u32 v1, {64*b}, v0")
        a("v_mul_u32_u24 v2, 2341, v1")
        a("v_lshrrev_b32 v2, 16, v2")
        a("v_mul_u32_u24 v3, 28, v2")
        a("v_sub_u32 v3, v1, v3")
        a("v_lshrrev_b32 v4, 3, v2")
        a("v_and_b32 v4, 1, v4")
        a("v_lshlrev_b32 v4, 1, v4")
        a("v_xor_b32 v3, v3, v4")
        a("v_mul_lo_u32 v2, v2, s29")
        a("v_lshl_add_u32 v2, v3, 4, v2")
        a(f"v_add_u32 v{12+b}, s28, v2")
    a("s_lshl_b32 s30, s12, 12")
    a("s_mul_i32 s31, s12, 7168")
    a("s_add_u32 s31, s31, 16384")
    a("s_mov_b32 s32, 0")
    a("s_mov_b32 s33, 0")
    a("s_mov_b32 s34, 0")
    lf = opt.get("g1_load_flags", "")
    def issue():
        a("s_add_u32 s36, s30, s34")
        a("s_add_u32 s37, s31, s34")
        for j in range(4):
            a(f"s_add_u32 m0, s36, {j*1024}")
            a("s_nop 0")
            a(f"buffer_load_dwordx4 v{8+j}, s[16:19], s32 offen lds {lf}")
        for b in range(7):
            a(f"s_add_u32 m0, s37, {b*1024}")
            a("s_nop 0")
            a(f"buffer_load_dwordx4 v{12+b}, s[20:23], s33 offen lds {lf}")
        a("s_add_u32 s32, s32, 128")
        a("s_add_u32 s33, s33, %d" % (64*7168))
        a("s_add_u32 s34, s34, %d" % ST1)
        a("s_cmp_eq_u32 s34, %d" % (3*ST1))
        a("s_cselect_b32 s34, 0, s34")
    a("s_mov_b32 s35, 0")
    a.label("L1_pp")
    issue()
    a("s_add_u32 s35, s35, 1")
    a("s_cmp_lt_u32 s35, 3")
    a("s_cbranch_scc1 L1_pp")
    a("s_waitcnt vmcnt(22)")
    a("s_barrier")
    a("s_mov_b32 s35, 0")
    a.label("L1_pl")
    a("s_waitcnt vmcnt(11)")
    a("s_barrier")
    issue()
    a("s_add_u32 s35, s35, 1")
    a("s_cmp_lt_u32 s35, 13")
    a("s_cbranch_scc1 L1_pl")
    a("s_waitcnt vmcnt(11)")
    a("s_barrier")
    a("s_waitcnt vmcnt(0)")
    a("s_barrier")
    a.label("L1_end")
    a("s_endpgm")

ST2 = 16384
def gemm2(a, opt):
    a.raw(".globl gemm2_kernel")
    a.raw(".p2align 8")
    a.raw(".type gemm2_kernel,@function")
    a.label("gemm2_kernel")
    a("s_cmp_ge_u32 s2, 256")
    a("s_cbranch_scc1 L2_end")
    stamp_start(a, opt)
    a("s_load_dwordx4 s[4:7], s[0:1], 16")
    a("s_load_dwordx2 s[8:9], s[0:1], 40")
    a("v_lshrrev_b32 v1, 6, v0")
    a("v_and_b32 v0, 63, v0")
    a("s_and_b32 s10, s2, 7")
    a("v_readfirstlane_b32 s12, v1")
    a("s_lshr_b32 s11, s2, 3")
    a("s_and_b32 s13, s10, 3")
    a("s_lshl_b32 s13, s13, 2")
    a("s_and_b32 s14, s11, 3")
    a("s_add_u32 s13, s13, s14")
    a("s_lshr_b32 s14, s10, 2")
    a("s_lshl_b32 s14, s14, 3")
    a("s_lshr_b32 s15, s11, 2")
    a("s_add_u32 s14, s14, s15")
    a("s_waitcnt lgkmcnt(0)")
    srd(a, 16, 4, 5, W_BYTES)
    srd(a, 20, 6, 7, O_BYTES)
    srd(a, 24, 8, 9, H_BYTES)
    ACC = 8
    WF = [40, 56]
    HB = 72
    VH = 1; VW = 2; VA = 3
    VO = 7
    T = 200
    a("s_mul_i32 s28, s13, 917504")
    a("s_lshl_b32 s29, s12, 11")
    a("s_add_u32 s28, s28, s29")
    a(f"v_lshl_add_u32 v{VH}, v0, 4, s28")
    a(f"v_lshrrev_b32 v{T}, 3, v0")
    a(f"v_and_b32 v{T+1}, 7, v0")
    a(f"v_lshrrev_b32 v{T+2}, 4, v0")
    a(f"v_lshlrev_b32 v{T+3}, 1, v{T+2}")
    a(f"v_xor_b32 v{T+1}, v{T+1}, v{T+3}")
    a(f"v_lshlrev_b32 v{T}, 11, v{T}")
    a(f"v_lshl_add_u32 v{T}, v{T+1}, 4, v{T}")
    a("s_lshl_b32 s28, s14, 7")
    a("s_lshl_b32 s29, s12, 16")
    a("s_add_u32 s28, s28, s29")
    a(f"v_add_u32 v{VW}, s28, v{T}")
    a(f"v_lshrrev_b32 v{T}, 2, v0")
    a(f"v_lshrrev_b32 v{T+1}, 1, v{T}")
    a(f"v_and_b32 v{T+1}, 3, v{T+1}")
    a(f"v_and_b32 v{T+3}, 3, v0")
    a(f"v_lshlrev_b32 v{T}, 7, v{T}")
    a(f"v_lshl_add_u32 v{T}, v{T+3}, 3, v{T}")
    for t in range(4):
        a(f"v_xor_b32 v{T+3}, {t}, v{T+1}")
        a(f"v_lshl_add_u32 v{VA+t}, v{T+3}, 5, v{T}")
    a(f"v_and_b32 v{T}, 15, v0")
    a("s_lshl_b32 s28, s13, 7")
    a("s_lshl_b32 s29, s12, 5")
    a("s_add_u32 s28, s28, s29")
    a(f"v_add_u32 v{T}, s28, v{T}")
    a(f"v_lshlrev_b32 v{T}, 11, v{T}")
    a(f"v_lshl_add_u32 v{T}, v{T+2}, 3, v{T}")
    a("s_lshl_b32 s28, s14, 7")
    a(f"v_add_u32 v{VO}, s28, v{T}")
    a("s_mov_b32 s36, 32768")
    for i in range(32):
        a(f"v_mov_b32 v{ACC+i}, 0")
    a("s_lshl_b32 s30, s12, 12")
    a("s_mov_b32 s32, 0")
    a("s_mov_b32 s33, 0")
    hf = opt.get("g2_h_flags", "")
    wf = opt.get("g2_w_flags", "")
    def issue(slot):
        r = []
        for j in range(4):
            if opt.get("g2_now"): break
            r.append(f"s_add_u32 m0, s30, {slot*ST2 + j*1024}")
            r.append(f"s_add_u32 s34, s33, {j*16384}")
            r.append(f"buffer_load_dwordx4 v{VW}, s[16:19], s34 offen lds {wf}")
        for u in range(4):
            if u: r.append(f"s_add_u32 s32, s32, 8192")
            for mi in range(2):
                if opt.get("g2_noh"): break
                r.append(f"buffer_load_dwordx4 {vr(HB+32*slot+8*u+4*mi,4)}, v{VH}, s[24:27], s32 offen offset:{mi*1024} {hf}")
        r.append("s_add_u32 s32, s32, 8192")
        r.append("s_add_u32 s33, s33, %d" % (128*2048))
        if opt.get("g2_small"):
            r.append("s_and_b32 s32, s32, 0x1ffff")
            r.append("s_and_b32 s33, s33, 0xfffff")
        return r
    def reads(slot, u, buf):
        r = []
        if opt.get("g2_nords"): return r
        for t in range(4):
            for hh in range(2):
                r.append(f"ds_read_b64_tr_b16 {vr(WF[buf]+4*t+2*hh,2)}, v{VA+t} offset:{slot*ST2 + (32*u+16*hh)*128}")
        return r
    def mfmas(slot, u, buf):
        m = []
        if opt.get("g2_nomfma"): return m
        for t in range(4):
            for mi in range(2):
                acc = ACC + 4*(t*2+mi)
                m.append(f"v_mfma_f32_16x16x32_bf16 {vr(acc,4)}, {vr(WF[buf]+4*t,4)}, {vr(HB+32*slot+8*u+4*mi,4)}, {vr(acc,4)}")
        return m
    def stage(slot, vm, do_issue):
        per = (0 if opt.get("g2_now") else 4) + (0 if opt.get("g2_noh") else 8)
        vm = vm // 12 * per
        a(f"s_waitcnt vmcnt({vm})")
        a("s_barrier")
        for s in reads(slot, 0, 0): a(s)
        if do_issue:
            for s in issue((slot+3) % 4): a(s)
        for u in range(4):
            a("s_waitcnt lgkmcnt(0)")
            nxt = reads(slot, u+1, (u+1) & 1) if u < 3 else []
            for s in interleave(mfmas(slot, u, u & 1), nxt, per=2): a(s)
    for s in range(3):
        for x in issue(s): a(x)
    a("s_mov_b32 s35, 0")
    a.raw(".p2align 6")
    a.label("L2_loop")
    for slot in range(4):
        stage(slot, 24, True)
    a("s_add_u32 s35, s35, 1")
    a("s_cmp_lt_u32 s35, 6")
    a("s_cbranch_scc1 L2_loop")
    stage(0, 24, True)
    stage(1, 24, False)
    stage(2, 12, False)
    stage(3, 0, False)
    a("s_nop 7")
    a("s_nop 7")
    of = opt.get("o_store_flags", "")
    k = 0
    for mi in range(2):
        for t in range(4):
            acc = ACC + 4*(t*2+mi)
            tb = T + 2*k; k += 1
            a(f"v_cvt_pk_bf16_f32 v{tb}, v{acc}, v{acc+1}")
            a(f"v_cvt_pk_bf16_f32 v{tb+1}, v{acc+2}, v{acc+3}")
            so = "s36" if mi else "0"
            a(f"buffer_store_dwordx2 {vr(tb,2)}, v{VO}, s[20:23], {so} offen offset:{t*32} {of}")
    stamp_end(a, opt, 1)
    a.label("L2_end")
    a("s_endpgm")

def kd(a, name, vgpr, sgpr=96):
    a.raw(f".amdhsa_kernel {name}")
    a.raw(f"  .amdhsa_next_free_vgpr {vgpr}")
    a.raw(f"  .amdhsa_next_free_sgpr {sgpr}")
    a.raw(f"  .amdhsa_accum_offset {(vgpr+3)//4*4}")
    a.raw("  .amdhsa_group_segment_fixed_size 0")
    a.raw("  .amdhsa_kernarg_size 48")
    a.raw("  .amdhsa_user_sgpr_count 2")
    a.raw("  .amdhsa_user_sgpr_kernarg_segment_ptr 1")
    a.raw("  .amdhsa_system_sgpr_workgroup_id_x 1")
    a.raw(".end_amdhsa_kernel")

def build(opt):
    a = Asm()
    a.raw(HDR.rstrip())
    a.raw(f"; @launch kernel=gemm1_kernel grid=(256,1,1) block=(512,1,1) lds={3*ST1}")
    a.raw(f"; @launch kernel=gemm2_kernel grid=(256,1,1) block=(256,1,1) lds={4*ST2}")
    if opt.get("stamp"):
        a.raw("; @launch kernel=stamp_kernel grid=(1,1,1) block=(256,1,1) lds=0")
    a.raw('.amdgcn_target "amdgcn-amd-amdhsa--gfx950"')
    a.raw(".text")
    gemm1(a, opt)
    gemm2(a, opt)
    if opt.get("stamp"): stamp_kernel(a)
    a.raw('.section .rodata,"a"')
    a.raw(".p2align 6")
    kd(a, "gemm1_kernel", 224)
    a.raw(".p2align 6")
    kd(a, "gemm2_kernel", 224)
    if opt.get("stamp"):
        a.raw(".p2align 6")
        kd(a, "stamp_kernel", 16)
    return a.text()

if __name__ == "__main__":
    opt = {}
    out = sys.argv[1]
    for kv in sys.argv[2:]:
        k, v = kv.split("=", 1)
        opt[k] = v.replace("+", " ")
    open(out, "w").write(build(opt))
```

```python
import sys
from gen import Asm, vr, srd, interleave, HDR, X_BYTES, W_BYTES, O_BYTES, kd, STAMP_OFF

KNAME = "standalone__dense_activation_relu__prompt_kernel"
ST1 = 45056
ST2 = 24576
R2 = 6
NS2 = 56
HSTRIDE = 1 << 20
HDATA = 917504
H_BYTES = 16 * HSTRIDE
LDS = R2 * ST2

def stamp_start(a, opt):
    if not opt.get("stamp"): return
    a("s_memrealtime s[60:61]")
    a("s_memtime s[62:63]")
    for i in range(16): a(f"s_mov_b32 s{64+i}, 0")

def mark(a, opt, i):
    if not opt.get("stamp"): return
    a(f"{'s_memrealtime' if opt.get('rtm') else 's_memtime'} s[{64+2*i}:{65+2*i}]")

def stamp_end(a, opt, kidx, cond_wave, vt=100):
    if not opt.get("stamp"): return
    lab = f"Lst_skip{kidx}"
    a("s_waitcnt vmcnt(0)")
    a("s_memrealtime s[46:47]")
    a("s_memtime s[48:49]")
    a("s_waitcnt lgkmcnt(0)")
    a("s_mov_b32 s52, s8")
    a("s_and_b32 s53, s9, 0xffff")
    a("s_mov_b32 s54, 0x10000000")
    a("s_mov_b32 s55, 0x20000")
    a("s_sub_u32 s51, s48, s62")
    a("s_getreg_b32 s56, hwreg(HW_REG_XCC_ID)")
    a(f"s_lshl_b32 s57, s2, 4")
    a(f"s_add_u32 s57, s57, {STAMP_OFF + kidx*4096}")
    a(f"v_mov_b32 v{vt}, s60")
    a(f"v_mov_b32 v{vt+1}, s46")
    a(f"v_mov_b32 v{vt+2}, s51")
    a(f"v_mov_b32 v{vt+3}, s56")
    a(f"v_mov_b32 v{vt+4}, s57")
    a(f"s_cmp_lg_u32 s12, {cond_wave}")
    a(f"s_cbranch_scc1 {lab}")
    a("s_mov_b64 exec, 1")
    a(f"buffer_store_dwordx4 v[{vt}:{vt+3}], v{vt+4}, s[52:55], 0 offen")
    a(f"s_lshl_b32 s57, s2, 5")
    a(f"s_add_u32 s57, s57, {STAMP_OFF + 65536 + kidx*8192}")
    a(f"v_mov_b32 v{vt+4}, s57")
    for i in range(8):
        a(f"s_sub_u32 s58, s{64+2*i}, {'s60' if opt.get('rtm') else 's62'}")
        a(f"v_mov_b32 v{vt+8+i}, s58")
    a(f"buffer_store_dwordx4 v[{vt+8}:{vt+11}], v{vt+4}, s[52:55], 0 offen")
    a(f"buffer_store_dwordx4 v[{vt+12}:{vt+15}], v{vt+4}, s[52:55], 0 offen offset:16")
    a("s_mov_b64 exec, -1")
    a.label(lab)

def fused(a, opt):
    HS = int(opt.get("hs", HSTRIDE))
    a.raw(f".globl {KNAME}")
    a.raw(".p2align 8")
    a.raw(f".type {KNAME},@function")
    a.label(KNAME)
    a("s_cmp_ge_u32 s2, 256")
    a("s_cbranch_scc1 L_end")
    stamp_start(a, opt)
    a("s_load_dwordx8 s[80:87], s[0:1], 0")
    a("s_load_dwordx4 s[4:7], s[0:1], 32")
    a("v_lshrrev_b32 v1, 6, v0")
    a("v_and_b32 v0, 63, v0")
    a("s_and_b32 s10, s2, 7")
    a("v_readfirstlane_b32 s12, v1")
    a("s_lshr_b32 s11, s2, 3")
    a("s_and_b32 s13, s10, 3")
    a("s_lshl_b32 s13, s13, 2")
    a("s_and_b32 s14, s11, 3")
    a("s_add_u32 s13, s13, s14")
    a("s_lshr_b32 s14, s10, 2")
    a("s_lshl_b32 s14, s14, 3")
    a("s_lshr_b32 s15, s11, 2")
    a("s_add_u32 s14, s14, s15")
    a("s_cmp_ge_u32 s12, 4")
    a("s_cbranch_scc1 L_prod")
    ACC = 0
    FR = [112, 156]
    VB = 200
    VL = 210
    VT = 211
    VS = 216
    V2 = 220
    a(f"v_mov_b32 v{VL}, v0")
    a("s_and_b32 s28, s12, 1")
    a("s_lshr_b32 s29, s12, 1")
    a(f"v_and_b32 v{VT}, 15, v{VL}")
    a(f"v_lshrrev_b32 v{VT+1}, 4, v{VL}")
    a(f"v_lshrrev_b32 v{VT+2}, 1, v{VT}")
    a(f"v_xor_b32 v{VT+2}, v{VT+1}, v{VT+2}")
    a(f"v_lshlrev_b32 v{VT+2}, 4, v{VT+2}")
    a(f"v_lshlrev_b32 v{VT+3}, 7, v{VT}")
    a("s_lshl_b32 s30, s28, 13")
    a(f"v_add3_u32 v{VB}, v{VT+2}, v{VT+3}, s30")
    a(f"v_xor_b32 v{VB+1}, 64, v{VB}")
    a(f"v_lshrrev_b32 v{VT+2}, 2, v{VL}")
    a(f"v_and_b32 v{VT+2}, 3, v{VT+2}")
    a(f"v_lshl_add_u32 v{VT+2}, v{VT+1}, 3, v{VT+2}")
    a(f"v_mul_u32_u24 v{VT+2}, 448, v{VT+2}")
    a(f"v_and_b32 v{VT+3}, 3, v{VL}")
    a(f"v_lshl_add_u32 v{VT+2}, v{VT+3}, 3, v{VT+2}")
    a(f"v_add_u32 v{VT+2}, 16384, v{VT+2}")
    a(f"v_and_b32 v{VT+3}, 1, v{VT+1}")
    a(f"v_lshlrev_b32 v{VT+3}, 5, v{VT+3}")
    a("s_lshl_b32 s30, s29, 8")
    a(f"v_add3_u32 v{VB+2}, v{VT+2}, v{VT+3}, s30")
    a(f"v_add_u32 v{VB+3}, s30, v{VT+2}")
    a(f"v_sub_u32 v{VB+3}, v{VB+3}, v{VT+3}")
    a("s_lshl_b32 s30, s29, 5")
    a(f"v_xor_b32 v{VT+3}, s30, v{VT+3}")
    a(f"v_add_u32 v{VT+2}, 192, v{VT+2}")
    a(f"v_add_u32 v{VB+4}, v{VT+2}, v{VT+3}")
    a(f"s_mul_i32 s30, s13, {HS}")
    a("s_lshl_b32 s31, s14, 2")
    a("s_add_u32 s31, s31, s30")
    a(f"s_add_u32 s31, s31, {HDATA}")
    a(f"v_mov_b32 v{VS+2}, s31")
    a("s_lshl_b32 s31, s28, 12")
    a("s_add_u32 s30, s30, s31")
    a("s_mul_i32 s31, s14, 57344")
    a("s_add_u32 s30, s30, s31")
    a("s_lshl_b32 s31, s29, 15")
    a("s_add_u32 s31, s30, s31")
    a(f"v_lshl_add_u32 v{VS}, v{VL}, 4, s31")
    a("s_lshl_b32 s31, s29, 3")
    a("s_add_u32 s31, s31, s30")
    a("s_add_u32 s31, s31, 24576")
    a(f"v_lshl_add_u32 v{VS+1}, v{VL}, 4, s31")
    a("s_mov_b32 s32, 8192")
    a("s_mov_b32 s33, 16384")
    a("s_lshl_b32 s30, s28, 12")
    a(f"v_lshl_add_u32 v{V2}, v{VL}, 4, s30")
    a(f"v_lshrrev_b32 v{VT+2}, 2, v{VL}")
    a(f"v_lshrrev_b32 v{VT+3}, 1, v{VT+2}")
    a(f"v_and_b32 v{VT+3}, 3, v{VT+3}")
    a(f"v_and_b32 v{VT+4}, 3, v{VL}")
    a(f"v_lshlrev_b32 v{VT+2}, 7, v{VT+2}")
    a(f"v_lshl_add_u32 v{VT+2}, v{VT+4}, 3, v{VT+2}")
    a(f"v_add_u32 v{VT+2}, 16384, v{VT+2}")
    a("s_lshl_b32 s30, s29, 1")
    a(f"v_xor_b32 v{VT+3}, s30, v{VT+3}")
    a(f"v_lshl_add_u32 v{V2+1}, v{VT+3}, 5, v{VT+2}")
    a(f"v_xor_b32 v{V2+2}, 32, v{V2+1}")
    a("s_lshl_b32 s30, s13, 7")
    a("s_lshl_b32 s31, s28, 6")
    a("s_add_u32 s30, s30, s31")
    a(f"v_add_u32 v{VT+2}, s30, v{VT}")
    a(f"v_lshlrev_b32 v{VT+2}, 11, v{VT+2}")
    a(f"v_lshl_add_u32 v{VT+2}, v{VT+1}, 3, v{VT+2}")
    a("s_lshl_b32 s30, s14, 7")
    a("s_lshl_b32 s31, s29, 6")
    a("s_add_u32 s30, s30, s31")
    a(f"v_add_u32 v{V2+6}, s30, v{VT+2}")
    a("s_waitcnt lgkmcnt(0)")
    a("s_mov_b32 s8, s6")
    a("s_mov_b32 s9, s7")
    srd(a, 24, 6, 7, H_BYTES)
    srd(a, 20, 86, 87, O_BYTES)
    srd(a, 16, 4, 5, 256)
    if opt.get("pf2"):
        srd(a, 40, 80, 81, X_BYTES)
        srd(a, 44, 82, 83, W_BYTES)
        srd(a, 48, 84, 85, W_BYTES)
        a("s_lshl_b32 s30, s2, 2")
        a("s_add_u32 s30, s30, s12")
        a("s_lshl_b32 s31, s30, 12")
        a(f"v_and_b32 v{VT+2}, 31, v{VL}")
        a(f"v_lshl_add_u32 v{VT+2}, v{VT+2}, 7, s31")
        a("s_mul_i32 s31, s30, 7168")
        a(f"v_min_u32 v{VT+3}, 55, v{VL}")
        a(f"v_lshl_add_u32 v{VT+3}, v{VT+3}, 7, s31")
        for _ in range(int(opt.get("pf2delay", 0))): a("s_sleep 8")
        a(f"buffer_load_dword v230, v{VT+2}, s[40:43], 0 offen")
        a(f"buffer_load_dword v230, v{VT+3}, s[44:47], 0 offen")
        if opt.get("pf2") == "2":
            a(f"buffer_load_dword v230, v{VT+3}, s[48:51], 0 offen")
    a("s_cmp_lg_u32 s12, 0")
    a("s_cbranch_scc1 L_c_noinit")
    a("s_mov_b64 exec, 1")
    a(f"v_mov_b32 v{VT+2}, 0")
    a(f"buffer_store_dword v{VT+2}, v{VS+2}, s[24:27], 0 offen sc0 sc1")
    a("s_lshl_b32 s30, s13, 4")
    a(f"v_mov_b32 v{VT+3}, s30")
    a(f"v_mov_b32 v{VT+4}, 1")
    a("s_waitcnt vmcnt(0)")
    a(f"buffer_atomic_add v{VT+4}, v{VT+3}, s[16:19], 0 offen sc1")
    a("s_mov_b64 exec, -1")
    a.label("L_c_noinit")
    for i in range(5):
        a(f"v_mov_b32 v{VB+5+i}, v{VB+i}")
    for i in range(112):
        a(f"v_mov_b32 v{ACC+i}, 0")
    a("s_mov_b32 s34, 0")
    a("s_mov_b32 s35, 0")
    XA = [VB+5, VB+6]
    WA = [VB+7, VB+8, VB+9]
    def reads(buf, kk):
        r = []
        fb = FR[buf]
        for mi in range(4):
            r.append(f"ds_read_b128 {vr(fb+4*mi,4)}, v{XA[kk]} offset:{mi*2048}")
        for fj in range(7):
            for hh in range(2):
                if fj < 6:
                    areg = WA[fj & 1]; off = fj*32 + (32*kk + 4*hh)*448
                else:
                    areg = WA[2]; off = (32*kk + 4*hh)*448
                r.append(f"ds_read_b64_tr_b16 {vr(fb+16+4*fj+2*hh,2)}, v{areg} offset:{off}")
        return r
    def mfmas(buf):
        m = []
        fb = FR[buf]
        for fj in range(7):
            for mi in range(4):
                acc = ACC + 4*(fj*4+mi)
                m.append(f"v_mfma_f32_16x16x32_bf16 {vr(acc,4)}, {vr(fb+16+4*fj,4)}, {vr(fb+4*mi,4)}, {vr(acc,4)}")
        return m
    adv = ["s_add_u32 s34, s34, %d" % ST1,
           "s_cmp_eq_u32 s34, %d" % (3*ST1),
           "s_cselect_b32 s34, 0, s34"]
    adv += [f"v_add_u32 v{VB+5+i}, s34, v{VB+i}" for i in range(5)]
    mark(a, opt, 0)
    a("s_barrier")
    mark(a, opt, 1)
    for s in reads(0, 0): a(s)
    a("s_waitcnt lgkmcnt(0)")
    a.raw(".p2align 6")
    a.label("L1_loop")
    for s in interleave(mfmas(0), reads(1, 1) + adv): a(s)
    a("s_waitcnt lgkmcnt(0)")
    a("s_barrier")
    for s in interleave(mfmas(1), reads(0, 0) + ["s_add_u32 s35, s35, 1", "s_cmp_lt_u32 s35, 15"]): a(s)
    a("s_waitcnt lgkmcnt(0)")
    a("s_cbranch_scc1 L1_loop")
    for s in interleave(mfmas(0), reads(1, 1)): a(s)
    a("s_waitcnt lgkmcnt(0)")
    a("s_barrier")
    for s in mfmas(1): a(s)
    mark(a, opt, 2)
    a("s_nop 7")
    a("s_nop 7")
    T = FR[0]
    t = 0
    sf = opt.get("h_store_flags", "sc1")
    for mi in range(4):
        for p in range(3):
            tb = T + 4*(t % 16); t += 1
            for h in range(2):
                acc = ACC + 4*((2*p+h)*4 + mi)
                for e in range(4):
                    a(f"v_maximum3_f32 v{acc+e}, v{acc+e}, 0, 0")
                a(f"v_cvt_pk_bf16_f32 v{tb+2*h}, v{acc}, v{acc+1}")
                a(f"v_cvt_pk_bf16_f32 v{tb+2*h+1}, v{acc+2}, v{acc+3}")
            so = ["0", "s32", "s33"][p]
            a(f"buffer_store_dwordx4 {vr(tb,4)}, v{VS}, s[24:27], {so} offen offset:{mi*1024} {sf}")
        tb = T + 4*(t % 16); t += 1
        acc = ACC + 4*(6*4 + mi)
        for e in range(4):
            a(f"v_maximum3_f32 v{acc+e}, v{acc+e}, 0, 0")
        a(f"v_cvt_pk_bf16_f32 v{tb}, v{acc}, v{acc+1}")
        a(f"v_cvt_pk_bf16_f32 v{tb+1}, v{acc+2}, v{acc+3}")
        if not opt.get("nox2"):
            a(f"buffer_store_dwordx2 {vr(tb,2)}, v{VS+1}, s[24:27], 0 offen offset:{mi*1024} {sf}")
    mark(a, opt, 3)
    A2 = 0
    for i in range(32):
        a(f"v_mov_b32 v{A2+i}, 0")
    for i in range(3):
        a(f"v_mov_b32 v{V2+3+i}, v{V2+i}")
    a(f"v_mov_b32 v{VT+2}, 1")
    a("s_waitcnt vmcnt(0)")
    mark(a, opt, 4)
    a("s_barrier")
    a("s_cmp_lg_u32 s12, 0")
    a("s_cbranch_scc1 L_c_nopub")
    a("s_mov_b64 exec, 1")
    if opt.get("wbl2"):
        a("buffer_wbl2 sc1")
        a("s_waitcnt vmcnt(0)")
        mark(a, opt, 7)
    a(f"buffer_store_dword v{VT+2}, v{VS+2}, s[24:27], 0 offen sc0 sc1")
    a("s_mov_b64 exec, -1")
    a.label("L_c_nopub")
    F2 = [32, 56]
    HA = V2+3; W2A = [V2+4, V2+5]
    def reads2(buf, u):
        r = []
        fb = F2[buf]
        r.append(f"ds_read_b128 {vr(fb,4)}, v{HA} offset:{u*8192}")
        for t in range(2):
            for hh in range(2):
                r.append(f"ds_read_b64_tr_b16 {vr(fb+16+4*t+2*hh,2)}, v{W2A[t]} offset:{(32*u+16*hh)*128}")
        for mi in range(1, 4):
            r.append(f"ds_read_b128 {vr(fb+4*mi,4)}, v{HA} offset:{u*8192+mi*1024}")
        return r
    def mfmas2(buf):
        m = []
        fb = F2[buf]
        for mi in range(4):
            for t in range(2):
                acc = A2 + 4*(mi*2+t)
                m.append(f"v_mfma_f32_16x16x32_bf16 {vr(acc,4)}, {vr(fb+16+4*t,4)}, {vr(fb+4*mi,4)}, {vr(acc,4)}")
        return m
    adv2 = ["s_add_u32 s34, s34, %d" % ST2,
            "s_cmp_eq_u32 s34, %d" % (R2*ST2),
            "s_cselect_b32 s34, 0, s34"]
    adv2 += [f"v_add_u32 v{V2+3+i}, s34, v{V2+i}" for i in range(3)]
    a("s_mov_b32 s34, 0")
    a("s_mov_b32 s35, 0")
    a("s_barrier")
    mark(a, opt, 5)
    for s in reads2(0, 0): a(s)
    a("s_waitcnt lgkmcnt(0)")
    a.raw(".p2align 6")
    a.label("L2_loop")
    for s in interleave(mfmas2(0), reads2(1, 1) + adv2, per=2): a(s)
    a("s_waitcnt lgkmcnt(0)")
    a("s_barrier")
    for s in interleave(mfmas2(1), reads2(0, 0) + ["s_add_u32 s35, s35, 1", f"s_cmp_lt_u32 s35, {NS2-1}"], per=2): a(s)
    a("s_waitcnt lgkmcnt(0)")
    a("s_cbranch_scc1 L2_loop")
    for s in interleave(mfmas2(0), reads2(1, 1), per=2): a(s)
    a("s_waitcnt lgkmcnt(0)")
    for s in mfmas2(1): a(s)
    mark(a, opt, 6)
    a("s_nop 7")
    a("s_nop 7")
    of = opt.get("o_store_flags", "")
    a("s_mov_b32 s32, 32768")
    a("s_mov_b32 s33, 65536")
    a("s_mov_b32 s34, 98304")
    k = 0
    for mi in range(4):
        for t in range(2):
            acc = A2 + 4*(mi*2+t)
            tb = 112 + 2*k; k += 1
            a(f"v_cvt_pk_bf16_f32 v{tb}, v{acc}, v{acc+1}")
            a(f"v_cvt_pk_bf16_f32 v{tb+1}, v{acc+2}, v{acc+3}")
            so = ["0", "s32", "s33", "s34"][mi]
            a(f"buffer_store_dwordx2 {vr(tb,2)}, v{V2+6}, s[20:23], {so} offen offset:{t*32} {of}")
    stamp_end(a, opt, 0, 0, vt=140)
    a("s_endpgm")
    a.label("L_prod")
    a("s_sub_u32 s3, s12, 4")
    a("v_lshrrev_b32 v1, 3, v0")
    a("v_and_b32 v2, 7, v0")
    a("v_lshrrev_b32 v3, 4, v0")
    a("v_xor_b32 v2, v2, v3")
    a("s_lshl_b32 s28, s13, 7")
    a("s_lshl_b32 s29, s3, 5")
    a("s_add_u32 s28, s28, s29")
    a("v_add_u32 v1, s28, v1")
    a("v_lshlrev_b32 v1, 11, v1")
    a("v_lshl_add_u32 v8, v2, 4, v1")
    a("v_xor_b32 v9, 64, v8")
    a("v_add_u32 v9, 16384, v9")
    a("v_add_u32 v10, 32768, v8")
    a("v_add_u32 v11, 32768, v9")
    a("s_mul_i32 s28, s3, %d" % (16*7168))
    a("s_mul_i32 s29, s14, 448")
    a("s_add_u32 s28, s28, s29")
    a("s_mov_b32 s29, 7168")
    for b in range(7):
        a(f"v_add_u32 v1, {64*b}, v0")
        a("v_mul_u32_u24 v2, 2341, v1")
        a("v_lshrrev_b32 v2, 16, v2")
        a("v_mul_u32_u24 v3, 28, v2")
        a("v_sub_u32 v3, v1, v3")
        a("v_lshrrev_b32 v4, 3, v2")
        a("v_and_b32 v4, 1, v4")
        a("v_lshlrev_b32 v4, 1, v4")
        a("v_xor_b32 v3, v3, v4")
        a("v_mul_u32_u24 v2, s29, v2")
        a("v_lshl_add_u32 v2, v3, 4, v2")
        a(f"v_add_u32 v{12+b}, s28, v2")
    a("s_lshl_b32 s30, s3, 12")
    a("s_mul_i32 s31, s3, 7168")
    a("s_add_u32 s31, s31, 16384")
    a("s_mov_b32 s32, 0")
    a("s_mov_b32 s33, 0")
    a("s_mov_b32 s34, 0")
    a("s_waitcnt lgkmcnt(0)")
    a("s_mov_b32 s8, s6")
    a("s_mov_b32 s9, s7")
    srd(a, 16, 80, 81, X_BYTES)
    srd(a, 20, 82, 83, W_BYTES)
    srd(a, 24, 6, 7, H_BYTES)
    srd(a, 40, 84, 85, W_BYTES)
    srd(a, 44, 4, 5, 256)
    lf = opt.get("g1_load_flags", "")
    def issue():
        a("s_add_u32 s36, s30, s34")
        a("s_add_u32 s37, s31, s34")
        for j in range(4):
            a(f"s_add_u32 m0, s36, {j*1024}")
            a("s_nop 0")
            a(f"buffer_load_dwordx4 v{8+j}, s[16:19], s32 offen {lf} lds")
        for b in range(7):
            a(f"s_add_u32 m0, s37, {b*1024}")
            a("s_nop 0")
            a(f"buffer_load_dwordx4 v{12+b}, s[20:23], s33 offen {lf} lds")
        a("s_add_u32 s32, s32, 128")
        a("s_add_u32 s33, s33, %d" % (64*7168))
        a("s_add_u32 s34, s34, %d" % ST1)
        a("s_cmp_eq_u32 s34, %d" % (3*ST1))
        a("s_cselect_b32 s34, 0, s34")
    PF = int(opt.get("pf", 0))
    npf = 1 if PF else 0
    issue()
    issue()
    a(f"s_mul_i32 s28, s13, {HS}")
    a("s_add_u32 s28, s28, s30")
    a("v_lshl_add_u32 v20, v0, 4, s28")
    a("v_lshrrev_b32 v1, 3, v0")
    a("v_and_b32 v2, 7, v0")
    a("v_lshrrev_b32 v3, 4, v0")
    a("v_lshlrev_b32 v3, 1, v3")
    a("v_xor_b32 v2, v2, v3")
    a("v_lshlrev_b32 v1, 11, v1")
    a("v_lshl_add_u32 v1, v2, 4, v1")
    a("s_lshl_b32 s28, s14, 7")
    a("s_lshl_b32 s29, s3, 15")
    a("s_add_u32 s28, s28, s29")
    a("v_add_u32 v21, s28, v1")
    a(f"v_add_u32 v22, {8*2048-1024}, v21")
    a("v_and_b32 v1, 15, v0")
    a(f"s_mul_i32 s28, s13, {HS}")
    a(f"s_add_u32 s28, s28, {HDATA}")
    a("v_lshl_add_u32 v23, v1, 2, s28")
    a("s_lshl_b32 s28, s13, 4")
    a("v_mov_b32 v24, s28")
    if PF:
        a("v_lshrrev_b32 v1, 2, v0")
        a("s_and_b32 s28, s14, 7")
        a("s_lshl_b32 s28, s28, 4")
        a("s_lshl_b32 s29, s13, 7")
        a("s_add_u32 s28, s28, s29")
        a("v_add_u32 v1, s28, v1")
        a("v_lshlrev_b32 v1, 11, v1")
        a("v_and_b32 v2, 3, v0")
        a("v_lshl_add_u32 v1, v2, 7, v1")
        a("s_lshl_b32 s28, s3, 9")
        a("v_add_u32 v1, s28, v1")
        a("buffer_load_dword v30, v1, s[16:19], 0 offen")
        a("v_lshrrev_b32 v1, 2, v0")
        a("v_and_b32 v1, 3, v1")
        a("s_and_b32 s28, s13, 3")
        a("s_lshl_b32 s28, s28, 4")
        a("s_lshl_b32 s29, s3, 2")
        a("s_add_u32 s28, s28, s29")
        a("v_add_u32 v1, s28, v1")
        a("v_lshrrev_b32 v2, 4, v0")
        a("v_lshl_add_u32 v1, v2, 6, v1")
        a("s_mov_b32 s29, 7168")
        a("v_mul_u32_u24 v1, s29, v1")
        a("v_and_b32 v2, 3, v0")
        a("v_lshl_add_u32 v1, v2, 7, v1")
        a("s_mul_i32 s28, s14, 448")
        a("v_add_u32 v25, s28, v1")
        a("s_mov_b32 s38, %d" % (2*64*7168))
        n0 = (PF + 1 + 3)//4
        for q in range(n0-1):
            a("buffer_load_dword v30, v25, s[20:23], s38 offen")
            a("s_add_u32 s38, s38, %d" % (4*64*7168))
        a("s_mul_i32 s28, s2, 224")
        a("s_mul_i32 s29, s3, 56")
        a("s_add_u32 s28, s28, s29")
        a("v_min_u32 v1, 55, v0")
        a("v_add_u32 v1, s28, v1")
        a("v_lshlrev_b32 v26, 7, v1")
        pre = 1 + n0
    else:
        pre = 0
    a(f"s_waitcnt vmcnt({11+pre-npf})")
    a("s_barrier")
    issue()
    if PF:
        a("buffer_load_dword v30, v25, s[20:23], s38 offen")
        a("s_mov_b32 s38, %d" % ((3+PF)*64*7168))
    a("s_mov_b32 s35, 0")
    a("s_lshl_b32 s39, s2, 2")
    a("s_add_u32 s39, s39, s3")
    a("s_mul_i32 s39, s39, 7168")
    a(f"s_waitcnt vmcnt({11+pre})")
    a("s_branch L1_pl_b")
    a.label("L1_pl")
    a(f"s_waitcnt vmcnt({11+2*npf})")
    a.label("L1_pl_b")
    a("s_barrier")
    issue()
    if PF:
        a("s_mov_b64 exec, 0xffff")
        a("buffer_load_dword v30, v25, s[20:23], s38 offen")
        a("s_mov_b64 exec, -1")
        a("s_add_u32 s38, s38, %d" % (64*7168))
    if opt.get("spf"):
        stp = int(opt.get("spf"))
        for q in range(5*128//stp):
            a(f"s_buffer_load_dword s90, s[40:43], s39")
            a(f"s_add_u32 s39, s39, {stp}")
    a("s_add_u32 s35, s35, 1")
    a("s_cmp_lt_u32 s35, 13")
    a("s_cbranch_scc1 L1_pl")
    if PF:
        a("buffer_load_dword v30, v26, s[40:43], 0 offen")
    a(f"s_waitcnt vmcnt({11+3*npf})")
    a("s_barrier")
    a(f"s_waitcnt vmcnt({2*npf})")
    a("s_barrier")
    a("s_barrier")
    hf = opt.get("g2_h_flags", "sc1")
    wf = opt.get("g2_w_flags", "")
    a("s_lshl_b32 s31, s3, 11")
    a("s_add_u32 s31, s31, 16384")
    a("s_mov_b32 s32, 0")
    a("s_mov_b32 s33, 0")
    def issue_w(slotexpr):
        a(f"s_add_u32 m0, s31, {slotexpr}")
        a("s_nop 0")
        a(f"buffer_load_dwordx4 v21, s[40:43], s33 offen {wf} lds")
        a(f"buffer_load_dwordx4 v22, s[40:43], s33 offen offset:1024 {wf} lds")
        a("s_add_u32 s33, s33, %d" % (64*2048))
    def issue_h(slotexpr):
        a(f"s_add_u32 m0, s30, {slotexpr}")
        a("s_nop 0")
        for i in range(4):
            a(f"buffer_load_dwordx4 v20, s[24:27], s32 offen offset:{i*1024} {hf} lds")
        a("s_add_u32 s32, s32, 16384")
    for s in range(R2):
        issue_w(s*ST2)
    a.label("L_pollc")
    a("buffer_load_dword v30, v24, s[44:47], 0 offen sc0 sc1")
    a("s_waitcnt vmcnt(0)")
    a("v_cmp_eq_u32 vcc, 16, v30")
    a("s_cbranch_vccnz L_pollc_ok")
    a("s_sleep 2")
    a("s_branch L_pollc")
    a.label("L_pollc_ok")
    mark(a, opt, 0)
    a("s_barrier")
    mark(a, opt, 1)
    a.label("L_pollf")
    a("buffer_load_dword v30, v23, s[24:27], 0 offen sc0 sc1")
    a("s_waitcnt vmcnt(0)")
    a("v_cmp_ne_u32 vcc, 1, v30")
    a("s_cbranch_vccz L_pollf_ok")
    a(f"s_sleep {opt.get('psleep', 1)}")
    a("s_branch L_pollf")
    a.label("L_pollf_ok")
    mark(a, opt, 2)
    if opt.get("inv", "0") == "1":
        a("buffer_inv sc1")
        ninv = 0
    for s in range(R2):
        issue_h(s*ST2)
    a(f"s_waitcnt vmcnt({4*(R2-1)})")
    mark(a, opt, 3)
    a("s_barrier")
    a("s_mov_b32 s34, 0")
    def adv_slot():
        a("s_add_u32 s34, s34, %d" % ST2)
        a("s_cmp_eq_u32 s34, %d" % (R2*ST2))
        a("s_cselect_b32 s34, 0, s34")
    for it in range(R2-2):
        a(f"s_waitcnt vmcnt({4*(R2-2-it) + 6*it})")
        a("s_barrier")
        issue_h("s34"); issue_w("s34"); adv_slot()
    a(f"s_mov_b32 s35, {R2-2}")
    a.label("L2_pl")
    a(f"s_waitcnt vmcnt({6*(R2-2)})")
    a("s_barrier")
    issue_h("s34"); issue_w("s34"); adv_slot()
    a("s_add_u32 s35, s35, 1")
    a(f"s_cmp_lt_u32 s35, {NS2-R2}")
    a("s_cbranch_scc1 L2_pl")
    for it in range(NS2-R2, NS2-1):
        a(f"s_waitcnt vmcnt({6*(NS2-2-it)})")
        a("s_barrier")
    stamp_end(a, opt, 1, 4, vt=140)
    a.label("L_end")
    a("s_endpgm")

def build(opt):
    a = Asm()
    a.raw(HDR.rstrip())
    a.raw(f"; @launch grid=(256,1,1) block=(512,1,1) lds={LDS}")
    a.raw('.amdgcn_target "amdgcn-amd-amdhsa--gfx950"')
    a.raw(".text")
    fused(a, opt)
    a.raw('.section .rodata,"a"')
    a.raw(".p2align 6")
    kd(a, KNAME, 232, 96)
    return a.text()

if __name__ == "__main__":
    opt = {}
    out = sys.argv[1]
    for kv in sys.argv[2:]:
        k, v = kv.split("=", 1)
        opt[k] = v.replace("+", " ")
    open(out, "w").write(build(opt))
```

```python
import sys
from gen import Asm, vr, srd, interleave, HDR, X_BYTES, W_BYTES, O_BYTES, kd, STAMP_OFF
from gen2 import stamp_start, mark, stamp_end

KNAME = "standalone__dense_activation_relu__prompt_kernel"
SLOT = 32768
R = 5
LDS = R * SLOT
HDATA = 917504
OOB = 0x7ff00000
BIAS = 0x100

def fused(a, opt):
    HS = int(opt.get("hs", 921600))
    H_BYTES = 16 * HS
    VPF = int(opt.get("vpf", 1))
    SPF = int(opt.get("spf", 1))
    ROT = int(opt.get("rot", 0))
    DA = int(opt.get("da", 4))
    DB = int(opt.get("db", 5))
    sf = opt.get("h_store_flags", "sc1")
    a.raw(f".globl {KNAME}")
    a.raw(".p2align 8")
    a.raw(f".type {KNAME},@function")
    a.label(KNAME)
    a("s_cmp_ge_u32 s2, 256")
    a("s_cbranch_scc1 L_end")
    stamp_start(a, opt)
    a("s_load_dwordx8 s[80:87], s[0:1], 0")
    a("s_load_dwordx4 s[4:7], s[0:1], 32")
    a("v_lshrrev_b32 v1, 6, v0")
    a("v_and_b32 v0, 63, v0")
    a("s_and_b32 s10, s2, 7")
    a("v_readfirstlane_b32 s12, v1")
    a("s_lshr_b32 s11, s2, 3")
    a("s_and_b32 s13, s10, 3")
    a("s_lshl_b32 s13, s13, 2")
    a("s_and_b32 s14, s11, 3")
    a("s_add_u32 s13, s13, s14")
    a("s_lshr_b32 s14, s10, 2")
    a("s_lshl_b32 s14, s14, 3")
    a("s_lshr_b32 s15, s11, 2")
    a("s_add_u32 s14, s14, s15")
    a("s_cmp_ge_u32 s12, 4")
    a("s_cbranch_scc1 L_prod")
    ACA, ACB, AC2 = 0, 48, 176
    F = [112, 144]
    SA = [[112, 144], [48, 80]]
    S2 = [[112, 144], [0, 24]]
    AA = 208
    AB = 212
    A2 = 218
    VSA, VSB, VOUT = 221, 222, 224
    VM = 226
    VP = 236
    VL = 240
    T = 241
    a(f"v_mov_b32 v{VL}, v0")
    if VPF:
        a("s_lshl_b32 s30, s2, 14")
        a("s_lshl_b32 s31, s12, 13")
        a("s_add_u32 s30, s30, s31")
        a(f"v_lshl_add_u32 v{T}, v{VL}, 7, s30")
        a("s_lshl_b32 s30, s2, 1")
        a("s_add_u32 s30, s30, s12")
        a("s_sub_u32 s30, s30, 2")
        a("s_mul_i32 s30, s30, 14336")
        a(f"v_lshl_add_u32 v{T+1}, v{VL}, 7, s30")
        a(f"v_add_u32 v{T+2}, {7168-3072}, v{T+1}")
        a(f"v_cmp_gt_u32 vcc, 24, v{VL}")
        a(f"v_mov_b32 v{T+3}, {OOB}")
        a("s_cmp_ge_u32 s12, 2")
        a(f"v_cndmask_b32 v{T+1}, v{T+2}, v{T+1}, vcc")
        a(f"v_cmp_gt_u32 vcc, 48, v{VL}")
        a("s_cbranch_scc0 L_vpf1")
        a("s_nop 0")
        a(f"v_cndmask_b32 v{T}, v{T+3}, v{T+1}, vcc")
        a.label("L_vpf1")
        a("s_waitcnt lgkmcnt(0)")
        a("s_cselect_b32 s44, s82, s80")
        a("s_cselect_b32 s45, s83, s81")
        a(f"s_mov_b32 s46, {X_BYTES}")
        a(f"s_cselect_b32 s46, {W_BYTES}, s46")
        a("s_and_b32 s45, s45, 0xffff")
        a("s_mov_b32 s47, 0x20000")
        for _ in range(int(opt.get("vpfdelay", 0))): a("s_sleep 4")
        a(f"buffer_load_dword v{VM}, v{T}, s[44:47], 0 offen")
    a("s_and_b32 s28, s12, 1")
    a("s_lshr_b32 s29, s12, 1")
    a(f"v_and_b32 v{T}, 15, v{VL}")
    a(f"v_lshrrev_b32 v{T+1}, 4, v{VL}")
    a(f"v_lshrrev_b32 v{T+2}, 1, v{T}")
    a(f"v_xor_b32 v{T+2}, v{T+1}, v{T+2}")
    a(f"v_lshlrev_b32 v{T+2}, 4, v{T+2}")
    a(f"v_lshl_add_u32 v{T+2}, v{T}, 7, v{T+2}")
    a("s_lshl_b32 s30, s12, 12")
    a(f"v_add_u32 v{AA}, s30, v{T+2}")
    a(f"v_xor_b32 v{AA+1}, 64, v{AA}")
    a("s_lshl_b32 s30, s28, 13")
    a(f"s_add_u32 s30, s30, {(16 % R)*SLOT}")
    a(f"v_add_u32 v{AB}, s30, v{T+2}")
    a(f"v_xor_b32 v{AB+1}, 64, v{AB}")
    a(f"v_lshrrev_b32 v{T+2}, 2, v{VL}")
    a(f"v_and_b32 v{T+2}, 3, v{T+2}")
    a(f"v_lshl_add_u32 v{T+3}, v{T+1}, 3, v{T+2}")
    a(f"v_and_b32 v{T+4}, 3, v{VL}")
    a(f"v_lshlrev_b32 v{T+4}, 3, v{T+4}")
    a(f"v_add_u32 v{T+4}, 16384, v{T+4}")
    a(f"v_and_b32 v{T+5}, 1, v{T+1}")
    a(f"v_mul_u32_u24 v{AA+2}, 192, v{T+3}")
    a(f"v_add_u32 v{AA+2}, v{AA+2}, v{T+4}")
    a(f"v_lshlrev_b32 v{AA+3}, 5, v{T+5}")
    a(f"v_sub_u32 v{AA+3}, v{AA+2}, v{AA+3}")
    a(f"v_lshl_add_u32 v{AA+2}, v{T+5}, 5, v{AA+2}")
    a(f"v_lshl_or_b32 v{T+2}, v{T+5}, 2, v{T+2}")
    a("s_lshl_b32 s30, s29, 2")
    a(f"v_xor_b32 v{T+2}, s30, v{T+2}")
    a(f"v_lshl_add_u32 v{T+3}, v{T+3}, 8, v{T+4}")
    a(f"v_lshl_add_u32 v{T+3}, v{T+2}, 5, v{T+3}")
    a(f"v_add_u32 v{AB+2}, {(16 % R)*SLOT}, v{T+3}")
    for t in range(1, 4):
        a(f"v_xor_b32 v{AB+2+t}, {t*32}, v{AB+2}")
    a("s_lshl_b32 s30, s28, 12")
    a(f"s_add_u32 s30, s30, {(32 % R)*SLOT}")
    a(f"v_lshl_add_u32 v{A2}, v{VL}, 4, s30")
    a(f"v_lshrrev_b32 v{T+2}, 2, v{VL}")
    a(f"v_lshrrev_b32 v{T+3}, 1, v{T+2}")
    a(f"v_and_b32 v{T+3}, 3, v{T+3}")
    a(f"v_lshl_add_u32 v{T+2}, v{T+2}, 7, v{T+4}")
    a("s_lshl_b32 s30, s29, 1")
    a(f"v_xor_b32 v{T+3}, s30, v{T+3}")
    a(f"v_lshl_add_u32 v{T+2}, v{T+3}, 5, v{T+2}")
    a(f"v_add_u32 v{A2+1}, {(32 % R)*SLOT}, v{T+2}")
    a(f"v_xor_b32 v{A2+2}, 32, v{A2+1}")
    a(f"s_mul_i32 s30, s13, {HS}")
    a("s_mul_i32 s31, s14, 24576")
    a("s_add_u32 s31, s31, s30")
    a("s_lshl_b32 s15, s12, 11")
    a("s_add_u32 s31, s31, s15")
    a(f"v_lshl_add_u32 v{VSA}, v{VL}, 4, s31")
    a("s_lshl_b32 s31, s14, 15")
    a("s_add_u32 s31, s31, s30")
    a(f"s_add_u32 s31, s31, {48*8192}")
    a("s_lshl_b32 s15, s29, 14")
    a("s_add_u32 s31, s31, s15")
    a("s_lshl_b32 s15, s28, 12")
    a("s_add_u32 s31, s31, s15")
    a(f"v_lshl_add_u32 v{VSB}, v{VL}, 4, s31")
    a("s_lshl_b32 s30, s13, 7")
    a("s_lshl_b32 s31, s28, 6")
    a("s_add_u32 s30, s30, s31")
    a(f"v_add_u32 v{T+2}, s30, v{T}")
    a(f"v_lshlrev_b32 v{T+2}, 11, v{T+2}")
    a(f"v_lshl_add_u32 v{T+2}, v{T+1}, 3, v{T+2}")
    a("s_lshl_b32 s30, s14, 7")
    a("s_lshl_b32 s31, s29, 6")
    a("s_add_u32 s30, s30, s31")
    a(f"v_add_u32 v{VOUT}, s30, v{T+2}")
    a("s_waitcnt lgkmcnt(0)")
    a("s_mov_b32 s8, s6")
    a("s_mov_b32 s9, s7")
    srd(a, 24, 6, 7, H_BYTES)
    srd(a, 20, 86, 87, O_BYTES)
    for i in range(48):
        a(f"v_mov_b32 v{ACA+i}, 0")
    for i in range(32):
        a(f"v_mov_b32 v{AC2+i}, 0")
    a(f"s_mov_b32 s32, {SLOT}")
    a(f"s_mov_b32 s33, {-(R-1)*SLOT & 0xffffffff}")
    a("s_mov_b32 s34, 0")
    a("s_mov_b32 s35, 0")
    def adv(regs):
        return ["s_add_u32 s34, s34, 1", f"s_cmp_eq_u32 s34, {R}", "s_cselect_b32 s36, s33, s32",
                "s_cselect_b32 s34, 0, s34"] + [f"v_add_u32 v{r}, s36, v{r}" for r in regs]
    NOR = opt.get("nords"); NOM = opt.get("nomfma")
    def readsA(kk, fb):
        r = []
        if NOR: return r
        for mi in range(2):
            r.append(f"ds_read_b128 {vr(fb+4*mi,4)}, v{AA+kk} offset:{mi*2048}")
        for t in range(6):
            for hh in range(2):
                r.append(f"ds_read_b64_tr_b16 {vr(fb+8+4*t+2*hh,2)}, v{AA+2+(t&1)} offset:{t*32+(32*kk+4*hh)*192}")
        return r
    def mfmaA(fb):
        m = []
        if NOM: return ["s_nop 0"]*8
        for t in range(6):
            for mi in range(2):
                acc = ACA + 8*((t>>1)*2 + mi) + 4*(t&1)
                m.append(f"v_mfma_f32_16x16x32_bf16 {vr(acc,4)}, {vr(fb+8+4*t,4)}, {vr(fb+4*mi,4)}, {vr(acc,4)}")
        return m
    def readsB(kk):
        fb = F[kk]; r = []
        if NOR: return r
        r.append(f"ds_read_b128 {vr(fb,4)}, v{AB+kk} offset:0")
        for t in range(4):
            for hh in range(2):
                r.append(f"ds_read_b64_tr_b16 {vr(fb+16+4*t+2*hh,2)}, v{AB+2+t} offset:{(32*kk+4*hh)*256}")
        for mi in range(1, 4):
            r.append(f"ds_read_b128 {vr(fb+4*mi,4)}, v{AB+kk} offset:{mi*2048}")
        return r
    def mfmaB(kk, zero=False):
        fb = F[kk]; m = []
        if NOM: return ["s_nop 0"]*8
        for mi in range(4):
            for t in range(4):
                acc = ACB + 8*((t>>1)*4 + mi) + 4*(t&1)
                c = "0" if zero else vr(acc,4)
                m.append(f"v_mfma_f32_16x16x32_bf16 {vr(acc,4)}, {vr(fb+16+4*t,4)}, {vr(fb+4*mi,4)}, {c}")
        return m
    def reads2(u, fb):
        r = []
        if NOR: return r
        r.append(f"ds_read_b128 {vr(fb,4)}, v{A2} offset:{u*8192}")
        for t in range(2):
            for hh in range(2):
                r.append(f"ds_read_b64_tr_b16 {vr(fb+16+4*t+2*hh,2)}, v{A2+1+t} offset:{(32*u+16*hh)*128}")
        for mi in range(1, 4):
            r.append(f"ds_read_b128 {vr(fb+4*mi,4)}, v{A2} offset:{u*8192+mi*1024}")
        return r
    def mfma2(fb):
        m = []
        if NOM: return ["s_nop 0"]*8
        for mi in range(4):
            for t in range(2):
                acc = AC2 + 4*(mi*2+t)
                m.append(f"v_mfma_f32_16x16x32_bf16 {vr(acc,4)}, {vr(fb+16+4*t,4)}, {vr(fb+4*mi,4)}, {vr(acc,4)}")
        return m
    def rdA(s): return readsA(0, SA[s][0]) + readsA(1, SA[s][1]) + adv(range(AA, AA+4))
    def mmA(s): return mfmaA(SA[s][0]) + mfmaA(SA[s][1])
    def rd2(s): return reads2(0, S2[s][0]) + reads2(1, S2[s][1]) + adv(range(A2, A2+3))
    def mm2(s): return mfma2(S2[s][0]) + mfma2(S2[s][1])
    def drain(tag, accbase, vs, nunits, shift, delay):
        a(f"s_cmp_ge_u32 s37, {nunits*8}")
        a(f"s_cbranch_scc1 L_nd{tag}")
        a.label(f"L_d{tag}")
        a("s_set_gpr_idx_on s37, gpr_idx(SRC0)")
        a("s_nop 0")
        for e in range(8):
            a(f"v_maximum3_f32 v{VM+e}, v{accbase+e}, 0, 0")
        a("s_set_gpr_idx_off")
        a(f"s_lshr_b32 s38, s37, {3+shift}")
        a("s_lshl_b32 s38, s38, 13")
        a(f"s_and_b32 s39, s37, {((1<<shift)-1)<<3}")
        a("s_lshl_b32 s39, s39, 7")
        a("s_add_u32 s38, s38, s39")
        for e in range(4):
            a(f"v_cvt_pk_bf16_f32 v{VP+e}, v{VM+2*e}, v{VM+2*e+1}")
        a("s_add_u32 s37, s37, 8")
        a("s_bitcmp1_b32 s37, 3")
        if not opt.get("nostore"):
            a(f"buffer_store_dwordx4 {vr(VP,4)}, v{vs}, s[24:27], s38 offen {sf}")
        a(f"s_cbranch_scc1 L_d{tag}")
        a(f"s_branch L_dd{tag}")
        a.label(f"L_nd{tag}")
        a("s_add_u32 s37, s37, 16")
        a(f"s_cmp_lt_u32 s37, {nunits*8 + 16*delay}")
        a(f"s_cbranch_scc1 L_dd{tag}")
        a("s_waitcnt vmcnt(0)")
        a.label(f"L_dd{tag}")
    mark(a, opt, 0)
    a("s_barrier")
    mark(a, opt, 1)
    for s in rdA(0): a(s)
    a("s_waitcnt lgkmcnt(0)")
    a("s_barrier")
    a.raw(".p2align 6")
    a.label("LA_loop")
    for s in interleave(mmA(0), rdA(1), per=2): a(s)
    a("s_add_u32 s35, s35, 1")
    a("s_cmp_eq_u32 s35, 8")
    a("s_waitcnt lgkmcnt(0)")
    a("s_barrier")
    a("s_cbranch_scc1 LA_exit")
    for s in interleave(mmA(1), rdA(0), per=2): a(s)
    a("s_waitcnt lgkmcnt(0)")
    a("s_barrier")
    a("s_branch LA_loop")
    a.label("LA_exit")
    for s in interleave(mmA(1), readsB(0), per=1): a(s)
    mark(a, opt, 2)
    a("s_mov_b32 s35, 0")
    a("s_mov_b32 s37, 0")
    a("s_waitcnt vmcnt(0) lgkmcnt(0)")
    for s in interleave(mfmaB(0, zero=True), readsB(1) + adv(range(AB, AB+6)), per=2): a(s)
    a("s_branch LB_mid")
    a.raw(".p2align 6")
    a.label("LB_loop")
    for s in interleave(mfmaB(0), readsB(1) + adv(range(AB, AB+6)), per=2): a(s)
    a.label("LB_mid")
    drain("B", ACA, VSA, 6, 1, DA)
    a("s_add_u32 s35, s35, 1")
    a("s_cmp_eq_u32 s35, 16")
    a("s_waitcnt lgkmcnt(0)")
    a("s_barrier")
    a("s_cbranch_scc1 LB_exit")
    for s in interleave(mfmaB(1), readsB(0), per=2): a(s)
    a("s_waitcnt lgkmcnt(0)")
    a("s_branch LB_loop")
    a.label("LB_exit")
    for s in interleave(mfmaB(1), rd2(1), per=2): a(s)
    mark(a, opt, 3)
    a("s_mov_b32 s35, 0")
    a("s_mov_b32 s37, 0")
    a("s_waitcnt lgkmcnt(0)")
    a("s_barrier")
    a.raw(".p2align 6")
    a.label("L2_loop")
    for s in interleave(mm2(1), rd2(0), per=2): a(s)
    drain("20", ACB, VSB, 8, 2, DB)
    a("s_add_u32 s35, s35, 1")
    a("s_cmp_eq_u32 s35, 28")
    a("s_waitcnt lgkmcnt(0)")
    a("s_barrier")
    a("s_cbranch_scc1 L2_exit")
    for s in interleave(mm2(0), rd2(1), per=2): a(s)
    drain("21", ACB, VSB, 8, 2, DB)
    if opt.get("stamp"):
        a("s_cmp_lg_u32 s35, 12")
        a("s_cbranch_scc1 L_nm4")
        mark(a, opt, 4)
        a.label("L_nm4")
    a("s_waitcnt lgkmcnt(0)")
    a("s_barrier")
    a("s_branch L2_loop")
    a.label("L2_exit")
    for s in mm2(0): a(s)
    mark(a, opt, 5)
    a("s_mov_b32 s32, 32768")
    a("s_mov_b32 s33, 65536")
    a("s_mov_b32 s34, 98304")
    a("s_nop 7")
    of = opt.get("o_store_flags", "")
    k = 0
    for mi in range(4):
        for t in range(2):
            acc = AC2 + 4*(mi*2+t)
            tb = 48 + 2*k; k += 1
            a(f"v_cvt_pk_bf16_f32 v{tb}, v{acc}, v{acc+1}")
            a(f"v_cvt_pk_bf16_f32 v{tb+1}, v{acc+2}, v{acc+3}")
            so = ["0", "s32", "s33", "s34"][mi]
            a(f"buffer_store_dwordx2 {vr(tb,2)}, v{VOUT}, s[20:23], {so} offen offset:{t*32} {of}")
    stamp_end(a, opt, 0, 0, vt=0)
    a("s_endpgm")
    a.label("L_prod")
    a("s_sub_u32 s3, s12, 4")
    a("v_lshrrev_b32 v1, 3, v0")
    a("v_and_b32 v2, 7, v0")
    a("v_lshrrev_b32 v3, 4, v0")
    a("v_xor_b32 v2, v2, v3")
    a("s_lshl_b32 s28, s13, 7")
    a("s_lshl_b32 s29, s3, 5")
    a("s_add_u32 s28, s28, s29")
    a("v_add_u32 v1, s28, v1")
    a("v_lshlrev_b32 v1, 11, v1")
    a("v_lshl_add_u32 v8, v2, 4, v1")
    a("v_xor_b32 v9, 64, v8")
    a(f"v_add_u32 v9, {16384-1024}, v9")
    a(f"v_add_u32 v10, {32768-2048}, v8")
    a(f"v_add_u32 v11, {32768-2048}, v9")
    a("s_mul_i32 s28, s3, %d" % (16*7168))
    a("s_mul_i32 s29, s14, 192")
    a("s_add_u32 s29, s28, s29")
    a("s_mov_b32 s15, 7168")
    for b in range(3):
        a(f"v_add_u32 v1, {64*b}, v0")
        a("v_mul_u32_u24 v2, 5462, v1")
        a("v_lshrrev_b32 v2, 16, v2")
        a("v_mul_u32_u24 v4, 12, v2")
        a("v_sub_u32 v4, v1, v4")
        a("v_lshrrev_b32 v5, 2, v2")
        a("v_and_b32 v5, 2, v5")
        a("v_xor_b32 v4, v4, v5")
        a("v_mul_u32_u24 v2, s15, v2")
        a("v_lshl_add_u32 v2, v4, 4, v2")
        if b: a(f"v_subrev_u32 v2, {b*1024}, v2")
        a(f"v_add_u32 v{12+b}, s29, v2")
    a("s_lshl_b32 s30, s3, 12")
    a("s_mul_i32 s31, s3, 3072")
    a("s_add_u32 s31, s31, 16384")
    a("s_mov_b32 s34, 0")
    a("s_add_u32 s58, s13, s14")
    a("s_and_b32 s58, s58, 3")
    a("s_mov_b32 s57, 0")
    def next_stage(rot, N, sx, sw, base=None):
        if rot:
            a("s_sub_u32 s56, s57, s58")
            a("s_and_b32 s56, s56, 3")
            a("s_cselect_b32 s56, -1, 3")
            a("s_add_i32 s56, s56, s57")
            a("s_cmp_lt_i32 s56, 0")
            a(f"s_cselect_b32 s59, {N}, 0")
            a("s_add_i32 s56, s56, s59")
            a(f"s_cmp_ge_i32 s56, {N}")
            a(f"s_cselect_b32 s59, {N}, 0")
            a("s_sub_i32 s56, s56, s59")
        else:
            a("s_mov_b32 s56, s57")
        if base: a(f"s_add_u32 s56, s56, {base}")
        if opt.get("small"): a("s_and_b32 s56, s56, 3")
        a(f"s_mul_i32 s94, s56, {sx}")
        a(f"s_mul_i32 s95, s56, {sw}")
        a("s_add_u32 s57, s57, 1")
    def commit():
        a("s_mov_b64 s[32:33], s[94:95]")
    next_stage(ROT & 1, 16, 128, 64*7168)
    commit()
    if opt.get("pprio"): a(f"s_setprio {opt['pprio']}")
    a("s_waitcnt lgkmcnt(0)")
    a("s_mov_b32 s8, s6")
    a("s_mov_b32 s9, s7")
    srd(a, 16, 80, 81, X_BYTES)
    srd(a, 20, 82, 83, W_BYTES)
    lf = opt.get("g1_load_flags", "")
    def adv_slot():
        a(f"s_add_u32 s34, s34, {SLOT}")
        a(f"s_cmp_eq_u32 s34, {R*SLOT}")
        a("s_cselect_b32 s34, 0, s34")
        a("s_add_u32 s96, s30, s34")
    def issue1(nw, rot, hooks=(), nend=None):
        hooks = list(hooks)
        def hk():
            if hooks: hooks.pop(0)()
        for j in range(4):
            a(f"buffer_load_dwordx4 v{8+j}, s[16:19], s32 offen offset:{j*1024} {lf} lds")
            if j == 0: next_stage(rot, 16, 128, 64*7168)
            else: hk()
        a("s_add_u32 m0, s31, s34")
        adv_slot()
        for b in range(nw):
            if b == nw-1:
                while hooks: hk()
                a("s_add_u32 s35, s35, 1")
                a(f"s_cmp_lt_u32 s35, {nend}")
            a(f"buffer_load_dwordx4 v{12+b}, s[20:23], s33 offen offset:{b*1024} {lf} lds")
            if b < nw-1: hk()
        commit()
        a("s_mov_b32 m0, s96")
    a("s_mov_b32 m0, s30")
    a("s_mov_b32 s35, 0")
    a.label("LP_pro")
    issue1(3, ROT & 1, nend=4)
    a("s_cbranch_scc1 LP_pro")
    srd(a, 24, 6, 7, H_BYTES)
    srd(a, 40, 84, 85, W_BYTES)
    srd(a, 44, 82, 83, W_BYTES)
    a(f"s_mul_i32 s48, s13, {HS}")
    a(f"s_add_u32 s48, s48, {HDATA}")
    a("s_lshl_b32 s49, s13, 4")
    a("s_mov_b32 s50, 1")
    a("s_mov_b32 s51, 0")
    a("s_mov_b32 s93, 1")
    a("s_cmp_eq_u32 s3, 1")
    a(f"s_cselect_b32 s55, {16+2+DA+5}, -1")
    a("s_cselect_b32 s91, 9, -1")
    a("s_cbranch_scc0 L_noinit")
    a("s_cmp_eq_u32 s14, 0")
    a("s_cbranch_scc0 L_noinit")
    a(f"s_movk_i32 s52, {BIAS}")
    a(f"s_movk_i32 s53, {BIAS}")
    a("s_atomic_swap s52, s[6:7], s48 glc")
    a("s_atomic_swap s53, s[6:7], s48 offset:0x80 glc")
    a("s_waitcnt lgkmcnt(0)")
    a("s_atomic_add s93, s[4:5], s49")
    a.label("L_noinit")
    a("s_cmp_eq_u32 s3, 0")
    a(f"s_cselect_b32 s54, {int(opt.get('polla', 16+2+DA+5+1))}, -1")
    a("s_cselect_b32 s53, 32, -1")
    a("v_and_b32 v1, 15, v0")
    a("v_lshlrev_b32 v2, 1, v3")
    a("v_xor_b32 v1, v1, v2")
    a("v_mul_u32_u24 v2, s15, v3")
    a("v_lshl_add_u32 v2, v1, 4, v2")
    a("s_lshl_b32 s29, s14, 8")
    a("s_add_u32 s29, s29, s28")
    a("s_add_u32 s29, s29, 3072")
    a("v_add_u32 v16, s29, v2")
    a(f"v_add_u32 v17, {4*7168-1024}, v16")
    a("v_xor_b32 v18, 128, v16")
    a(f"v_add_u32 v18, {8*7168-2048}, v18")
    a(f"v_add_u32 v19, {4*7168-1024}, v18")
    a(f"s_mul_i32 s28, s13, {HS}")
    a("s_add_u32 s29, s28, s30")
    a("v_lshl_add_u32 v20, v0, 4, s29")
    a("v_lshrrev_b32 v1, 3, v0")
    a("v_and_b32 v2, 7, v0")
    a("v_lshlrev_b32 v4, 1, v3")
    a("v_xor_b32 v2, v2, v4")
    a("v_lshlrev_b32 v1, 11, v1")
    a("v_lshl_add_u32 v1, v2, 4, v1")
    a("s_lshl_b32 s29, s14, 7")
    a("s_lshl_b32 s36, s3, 15")
    a("s_add_u32 s29, s29, s36")
    a("v_add_u32 v21, s29, v1")
    a(f"v_add_u32 v22, {8*2048-1024}, v21")
    a("s_lshl_b32 s92, s2, 2")
    a("s_add_u32 s92, s92, s3")
    a("s_lshr_b32 s38, s92, 4")
    a("s_mul_i32 s38, s38, 7168")
    a("s_and_b32 s39, s92, 15")
    a("s_lshl_b32 s39, s39, 8")
    a("s_add_u32 s38, s38, s39")
    a("s_add_u32 s38, s38, 3072")
    a(f"s_mov_b32 s39, {64*7168}")
    a("s_lshl_b32 s92, s92, 8")
    SP0 = int(opt.get("sp0", 6))
    def spf_issue():
        if not SPF: return
        for q in range(4):
            a(f"s_buffer_load_dword s90, s[44:47], s38 offset:{q*64}")
        a("s_add_u32 s38, s38, s39")
    def events(tag):
        a("s_cmp_lg_u32 s35, s55")
        a(f"s_cbranch_scc1 L_na{tag}")
        a.label(f"L_ic{tag}")
        a("s_cmp_eq_u32 s51, 1")
        a(f"s_cbranch_scc1 L_iok{tag}")
        a("s_waitcnt lgkmcnt(0)")
        a("s_cmp_eq_u32 s51, 1")
        a(f"s_cbranch_scc1 L_iok{tag}")
        a("s_mov_b32 s51, 0")
        a("s_atomic_add s51, s[4:5], s49 glc")
        a(f"s_branch L_ic{tag}")
        a.label(f"L_iok{tag}")
        a("s_atomic_add s93, s[6:7], s48")
        a("s_add_u32 s48, s48, 128")
        a(f"s_mov_b32 s55, {33+3+DB+5}")
        a.label(f"L_na{tag}")
        a("s_cmp_ge_u32 s35, s54")
        a(f"s_cbranch_scc0 L_nq{tag}")
        a("s_cmp_eq_u32 s50, 0")
        a(f"s_cbranch_scc1 L_nq{tag}")
        a(f"s_cmpk_eq_u32 s50, {BIAS+16}")
        a(f"s_cbranch_scc1 L_nq{tag}")
        a("s_mov_b32 s50, 0")
        a("s_atomic_add s50, s[6:7], s48 glc")
        a.label(f"L_nq{tag}")
    WA = int(opt.get("wa", 21))
    WB = int(opt.get("wb", 21))
    W2 = 18
    def hA1():
        if SPF:
            a(f"s_cmp_lt_u32 s35, {SP0}")
            a("s_cbranch_scc1 L_nsp")
            spf_issue()
            a.label("L_nsp")
    def hA2():
        a("s_cmp_lg_u32 s35, s91")
        a("s_cbranch_scc1 L_nic")
        a("s_atomic_add s51, s[4:5], s49 glc")
        a.label("L_nic")
    a.label("LPA")
    a(f"s_waitcnt vmcnt({WA})")
    a("s_barrier")
    issue1(3, ROT & 1, [hA1, hA2], nend=16)
    a("s_cbranch_scc1 LPA")
    mark(a, opt, 0)
    for b in range(4):
        a(f"v_mov_b32 v{12+b}, v{16+b}")
    a("s_lshl_b32 s31, s3, 12")
    a("s_add_u32 s31, s31, 16384")
    a("s_mov_b32 s57, 0")
    next_stage(ROT & 2, 16, 128, 64*7168)
    commit()
    def hB1():
        if SPF:
            a(f"s_cmp_lg_u32 s35, {SP0+16}")
            a("s_cbranch_scc1 L_nsw")
            a("s_mov_b32 s44, s40")
            a("s_mov_b32 s45, s41")
            a("s_mov_b32 s38, s92")
            a(f"s_mov_b32 s39, {128*2048}")
            a.label("L_nsw")
            spf_issue()
    a.label("LPB")
    a(f"s_waitcnt vmcnt({WB})")
    a("s_barrier")
    issue1(4, ROT & 2, [hB1, lambda: events("B")], nend=32)
    a("s_cbranch_scc1 LPB")
    mark(a, opt, 1)
    hf = opt.get("g2_h_flags", "sc1")
    wf = opt.get("g2_w_flags", "")
    a("s_lshl_b32 s31, s3, 11")
    a("s_add_u32 s31, s31, 16384")
    a("s_mov_b32 s57, 0")
    a("s_mov_b32 s88, 24")
    a("s_mov_b32 s89, 0")
    next_stage(ROT & 4, "s88", 16384, 64*2048, base="s89")
    commit()
    a.label("LP2")
    a("s_cmp_lg_u32 s35, s53")
    a("s_cbranch_scc1 L_nogate")
    a.label("L_g")
    a(f"s_cmpk_eq_u32 s50, {BIAS+16}")
    a("s_cbranch_scc1 L_gok")
    a("s_waitcnt lgkmcnt(0)")
    a(f"s_cmpk_eq_u32 s50, {BIAS+16}")
    a("s_cbranch_scc1 L_gok")
    a("s_mov_b32 s50, 0")
    a("s_atomic_add s50, s[6:7], s48 glc")
    a("s_branch L_g")
    a.label("L_gok")
    a("s_mov_b32 s54, -1")
    a("s_cmp_eq_u32 s35, 32")
    a("s_cbranch_scc0 L_gate2")
    mark(a, opt, 2)
    a("s_add_u32 s48, s48, 128")
    a("s_mov_b32 s50, 1")
    a("s_mov_b32 s53, 56")
    a(f"s_mov_b32 s54, {int(opt.get('pollb', 33+3+DB+5+1))}")
    a("s_branch L_nogate")
    a.label("L_gate2")
    mark(a, opt, 3)
    a.label("L_nogate")
    a(f"s_waitcnt vmcnt({W2})")
    a("s_barrier")
    def ldh(i): a(f"buffer_load_dwordx4 v20, s[24:27], s32 offen offset:{i*1024} {hf} lds")
    ldh(0)
    a("s_cmp_lg_u32 s35, 55")
    a("s_cbranch_scc1 L_nseg")
    a("s_mov_b32 s57, 0")
    a("s_mov_b32 s88, 32")
    a("s_mov_b32 s89, 24")
    a.label("L_nseg")
    next_stage(ROT & 4, "s88", 16384, 64*2048, base="s89")
    ldh(1)
    if SPF:
        a(f"s_cmp_ge_u32 s35, {SP0+16+28}")
        a("s_cbranch_scc1 L_nsp2")
        spf_issue()
        a.label("L_nsp2")
    ldh(2)
    events("2")
    ldh(3)
    a("s_add_u32 m0, s31, s34")
    adv_slot()
    a(f"buffer_load_dwordx4 v21, s[40:43], s33 offen {wf} lds")
    a("s_add_u32 s35, s35, 1")
    a("s_cmp_lt_u32 s35, 88")
    a(f"buffer_load_dwordx4 v22, s[40:43], s33 offen offset:1024 {wf} lds")
    commit()
    a("s_mov_b32 m0, s96")
    a("s_cbranch_scc1 LP2")
    for n in range(3, -1, -1):
        a(f"s_waitcnt vmcnt({n*6})")
        a("s_barrier")
    a("s_barrier")
    stamp_end(a, opt, 1, 4, vt=100)
    a.label("L_end")
    a("s_endpgm")

def build(opt):
    a = Asm()
    a.raw(HDR.rstrip())
    a.raw(f"; @launch grid=(256,1,1) block=(512,1,1) lds={LDS}")
    a.raw('.amdgcn_target "amdgcn-amd-amdhsa--gfx950"')
    a.raw(".text")
    fused(a, opt)
    a.raw('.section .rodata,"a"')
    a.raw(".p2align 6")
    kd(a, KNAME, 248, 100)
    return a.text()

if __name__ == "__main__":
    opt = {}
    out = sys.argv[1]
    for kv in sys.argv[2:]:
        k, v = kv.split("=", 1)
        opt[k] = v.replace("+", " ")
    open(out, "w").write(build(opt))
```

```python
import sys, re
from gen import STAMP_OFF
src=open(sys.argv[1]).read()
q=sys.argv[3]
K="standalone__dense_activation_relu__prompt_kernel"
m=re.search(r"; @launch grid=\(256,1,1\) block=\(512,1,1\) lds=(\d+)\n",src)
lds=m.group(1)
hdr=f"; @launch kernel={K} grid=(256,1,1) block=(512,1,1) lds={lds}\n; @launch kernel=leak_kernel grid=(1,1,1) block=(256,1,1) lds=0\n"
src=src.replace(m.group(0),hdr)
body=""
if q=="none":
    body="    s_mov_b32 s30, 0\n"
elif q=="span":
    body=f"""    v_lshlrev_b32 v1, 4, v0
    v_add_u32 v1, {STAMP_OFF}, v1
    buffer_load_dwordx4 v[4:7], v1, s[12:15], 0 offen
    v_mov_b32 v2, 0
    s_waitcnt vmcnt(0)
    v_not_b32 v8, v4
    buffer_atomic_umax v8, v2, s[8:11], 0 offen
    buffer_atomic_umax v5, v2, s[8:11], 0 offen offset:4
    s_waitcnt vmcnt(0)
    s_barrier
    buffer_load_dwordx2 v[10:11], v2, s[8:11], 0 offen sc0 sc1
    s_waitcnt vmcnt(0)
    v_not_b32 v10, v10
    v_sub_u32 v10, v11, v10
    s_nop 1
    v_readfirstlane_b32 s30, v10
    s_nop 3
    s_mul_i32 s30, s30, 10
"""
else:
    if q=="c": base=STAMP_OFF+8; stride=4
    elif q[0]=="m": base=STAMP_OFF+65536+4*int(q[1:]); stride=5
    elif q[0]=="p": base=STAMP_OFF+65536+8192+4*int(q[1:]); stride=5
    body=f"""    v_lshlrev_b32 v1, {stride}, v0
    v_add_u32 v1, {base}, v1
    buffer_load_dword v4, v1, s[12:15], 0 offen
    v_mov_b32 v2, 0
    s_waitcnt vmcnt(0)
    buffer_atomic_add v4, v2, s[8:11], 0 offen
    s_waitcnt vmcnt(0)
    s_barrier
    buffer_load_dword v10, v2, s[8:11], 0 offen sc0 sc1
    s_waitcnt vmcnt(0)
    v_readfirstlane_b32 s30, v10
    s_nop 3
    s_lshr_b32 s30, s30, 8
    s_mul_i32 s30, s30, 6554
    s_lshr_b32 s30, s30, 16
"""
extra=f""".globl leak_kernel
.p2align 8
.type leak_kernel,@function
leak_kernel:
    s_cmp_ge_u32 s2, 1
    s_cbranch_scc1 Ll_end
    s_load_dwordx4 s[4:7], s[0:1], 32
    s_waitcnt lgkmcnt(0)
    s_mov_b32 s8, s4
    s_and_b32 s9, s5, 0xffff
    s_mov_b32 s10, 256
    s_mov_b32 s11, 0x20000
    s_mov_b32 s12, s6
    s_and_b32 s13, s7, 0xffff
    s_mov_b32 s14, 0x10000000
    s_mov_b32 s15, 0x20000
{body}    s_min_u32 s30, s30, 100000
    s_memrealtime s[20:21]
    s_waitcnt lgkmcnt(0)
Ll_spin:
    s_memrealtime s[22:23]
    s_waitcnt lgkmcnt(0)
    s_sub_u32 s24, s22, s20
    s_cmp_lt_u32 s24, s30
    s_cbranch_scc1 Ll_spin
Ll_end:
    s_endpgm
"""
kd=""".p2align 6
.amdhsa_kernel leak_kernel
  .amdhsa_next_free_vgpr 16
  .amdhsa_next_free_sgpr 40
  .amdhsa_accum_offset 16
  .amdhsa_group_segment_fixed_size 0
  .amdhsa_kernarg_size 48
  .amdhsa_user_sgpr_count 2
  .amdhsa_user_sgpr_kernarg_segment_ptr 1
  .amdhsa_system_sgpr_workgroup_id_x 1
.end_amdhsa_kernel
"""
src=src.replace('.section .rodata,"a"',extra+'.section .rodata,"a"')+kd
open(sys.argv[2],"w").write(src)
```

```python
import sys
from gen import Asm, vr, srd, interleave, HDR, X_BYTES, W_BYTES, O_BYTES, kd, STAMP_OFF
from gen2 import stamp_start, mark, stamp_end

KNAME = "standalone__dense_activation_relu__prompt_kernel"
SLOT = 32768
R = 5
LDS = R * SLOT
HDATA = 917504
HS = 921600
PBASE = 16 * HS
WS_BYTES = PBASE + 128 * 65536
OOB = 0x7ff00000
BIAS = 0x100

def fused(a, opt):
    VPF = int(opt.get("vpf", 1))
    SPF = int(opt.get("spf", 1))
    AF = int(opt.get("af", 20))
    ROT = int(opt.get("rot", 1))
    KF = AF + 16
    KH = 32 - AF + 8
    NF = 32 + KF + 2
    NH = 32 + KH
    D = 3
    sf = opt.get("sf", "sc1")
    lf1 = opt.get("lf1", "sc1")
    lf2 = opt.get("lf2", "sc1")
    a.raw(f".globl {KNAME}")
    a.raw(".p2align 8")
    a.raw(f".type {KNAME},@function")
    a.label(KNAME)
    a("s_cmp_ge_u32 s2, 256")
    a("s_cbranch_scc1 L_end")
    stamp_start(a, opt)
    a("s_load_dwordx8 s[80:87], s[0:1], 0")
    a("s_load_dwordx4 s[4:7], s[0:1], 32")
    a("v_lshrrev_b32 v1, 6, v0")
    a("v_and_b32 v0, 63, v0")
    a("s_and_b32 s10, s2, 7")
    a("v_readfirstlane_b32 s12, v1")
    a("s_lshr_b32 s11, s2, 3")
    a("s_and_b32 s13, s10, 3")
    a("s_lshl_b32 s13, s13, 2")
    a("s_and_b32 s14, s11, 3")
    a("s_add_u32 s13, s13, s14")
    if int(opt.get("mix", 1)):
        a("s_and_b32 s14, s10, 4")
        a("s_lshr_b32 s10, s11, 4")
        a("s_lshr_b32 s11, s11, 2")
        a("s_and_b32 s11, s11, 3")
        a("s_add_u32 s11, s11, s14")
    else:
        a("s_lshr_b32 s10, s10, 2")
        a("s_lshr_b32 s11, s11, 2")
    a("s_lshl_b32 s14, s10, 3")
    a("s_add_u32 s14, s14, s11")
    a(f"s_mul_i32 s15, s13, {HS}")
    a("s_cmp_ge_u32 s12, 4")
    a("s_cbranch_scc1 L_prod")
    ACC = 0
    BUF = [64, 128]
    A1 = 192
    AW = 194
    AV = 198
    AH = 200
    VS = 202
    VL = 205
    T = 206
    PK = 216
    a(f"v_mov_b32 v{VL}, v0")
    if VPF:
        a("s_lshl_b32 s30, s2, 14")
        a("s_lshl_b32 s31, s12, 13")
        a("s_add_u32 s30, s30, s31")
        a(f"v_lshl_add_u32 v{T}, v{VL}, 7, s30")
        a("s_lshl_b32 s30, s2, 1")
        a("s_add_u32 s30, s30, s12")
        a("s_sub_u32 s30, s30, 2")
        a("s_mul_i32 s30, s30, 14336")
        a(f"v_lshrrev_b32 v{T+1}, 5, v{VL}")
        a(f"v_mul_u32_u24 v{T+1}, {7168-4096}, v{T+1}")
        a(f"v_lshl_add_u32 v{T+2}, v{VL}, 7, s30")
        a("s_cmp_ge_u32 s12, 2")
        a("s_cbranch_scc0 L_vpf1")
        a(f"v_add_u32 v{T}, v{T+1}, v{T+2}")
        a.label("L_vpf1")
        a("s_waitcnt lgkmcnt(0)")
        a("s_cselect_b32 s44, s82, s80")
        a("s_cselect_b32 s45, s83, s81")
        a(f"s_mov_b32 s46, {X_BYTES}")
        a(f"s_cselect_b32 s46, {W_BYTES}, s46")
        a("s_and_b32 s45, s45, 0xffff")
        a("s_mov_b32 s47, 0x20000")
        a(f"buffer_load_dword v{PK}, v{T}, s[44:47], 0 offen")
    a("s_and_b32 s28, s12, 1")
    a("s_lshr_b32 s29, s12, 1")
    a(f"v_and_b32 v{T}, 15, v{VL}")
    a(f"v_lshrrev_b32 v{T+1}, 4, v{VL}")
    a(f"v_lshrrev_b32 v{T+2}, 1, v{T}")
    a(f"v_xor_b32 v{T+2}, v{T+1}, v{T+2}")
    a(f"v_lshlrev_b32 v{T+2}, 4, v{T+2}")
    a(f"v_lshl_add_u32 v{T+2}, v{T}, 7, v{T+2}")
    a("s_lshl_b32 s30, s28, 13")
    a(f"v_add_u32 v{A1}, s30, v{T+2}")
    a(f"v_xor_b32 v{A1+1}, 64, v{A1}")
    a(f"v_lshl_add_u32 v{AH}, v{VL}, 4, s30")
    a("s_lshl_b32 s30, s12, 13")
    a(f"v_lshl_add_u32 v{AH+1}, v{VL}, 4, s30")
    a(f"v_lshrrev_b32 v{T+2}, 2, v{VL}")
    a(f"v_and_b32 v{T+2}, 3, v{T+2}")
    a(f"v_lshl_add_u32 v{T+3}, v{T+1}, 3, v{T+2}")
    a(f"v_and_b32 v{T+4}, 3, v{VL}")
    a(f"v_lshlrev_b32 v{T+4}, 3, v{T+4}")
    a(f"v_add_u32 v{T+4}, 16384, v{T+4}")
    a(f"v_and_b32 v{T+5}, 1, v{T+1}")
    a(f"v_lshl_or_b32 v{T+6}, v{T+5}, 2, v{T+2}")
    a("s_lshl_b32 s30, s29, 2")
    a(f"v_xor_b32 v{T+6}, s30, v{T+6}")
    a(f"v_lshl_add_u32 v{T+3}, v{T+3}, 8, v{T+4}")
    a(f"v_lshl_add_u32 v{AW}, v{T+6}, 5, v{T+3}")
    for t in range(1, 4):
        a(f"v_xor_b32 v{AW+t}, {t*32}, v{AW}")
    a(f"v_lshrrev_b32 v{T+6}, 1, v{T+1}")
    a(f"v_lshl_add_u32 v{T+6}, v{T+6}, 12, v{T+4}")
    a(f"v_lshl_add_u32 v{T+3}, v{T+5}, 3, v{T+2}")
    a(f"v_lshl_add_u32 v{T+6}, v{T+3}, 7, v{T+6}")
    a(f"v_lshrrev_b32 v{T+3}, 1, v{T+2}")
    a(f"v_lshl_or_b32 v{T+3}, v{T+5}, 1, v{T+3}")
    a("s_lshl_b32 s30, s29, 1")
    a(f"v_xor_b32 v{T+3}, s30, v{T+3}")
    a(f"v_lshl_add_u32 v{AV}, v{T+3}, 5, v{T+6}")
    a(f"v_add_u32 v{AV}, {(16 % R)*SLOT}, v{AV}")
    a(f"v_xor_b32 v{AV+1}, 32, v{AV}")
    a("s_lshl_b32 s30, s28, 13")
    a("s_add_u32 s30, s30, s15")
    a("s_lshl_b32 s31, s14, 1")
    a("s_add_u32 s31, s31, s29")
    a("s_lshl_b32 s31, s31, 14")
    a("s_add_u32 s31, s31, s30")
    a(f"v_lshl_add_u32 v{VS}, v{VL}, 4, s31")
    a(f"s_add_u32 s31, s31, {16*16384}")
    a("s_lshl_b32 s36, s11, 14")
    a("s_add_u32 s36, s36, s30")
    a(f"s_add_u32 s36, s36, {48*16384}")
    a("s_lshl_b32 s37, s29, 10")
    a("s_add_u32 s36, s36, s37")
    a("s_cmp_eq_u32 s10, 1")
    a("s_cselect_b32 s31, s31, s36")
    a(f"v_lshl_add_u32 v{VS+1}, v{VL}, 4, s31")
    a("s_lshl_b32 s30, s13, 7")
    a("s_lshl_b32 s31, s28, 6")
    a("s_add_u32 s30, s30, s31")
    a(f"v_add_u32 v{T+2}, s30, v{T}")
    a(f"v_lshlrev_b32 v{T+2}, 11, v{T+2}")
    a(f"v_lshl_add_u32 v{T+2}, v{T+5}, 5, v{T+2}")
    a(f"v_lshrrev_b32 v{T+3}, 1, v{T+1}")
    a(f"v_lshl_add_u32 v{T+2}, v{T+3}, 4, v{T+2}")
    a("s_lshl_b32 s30, s11, 8")
    a("s_lshl_b32 s31, s29, 7")
    a("s_add_u32 s30, s30, s31")
    a(f"v_add_u32 v{VS+2}, s30, v{T+2}")
    a("s_lshl_b32 s30, s13, 3")
    a("s_add_u32 s30, s30, s11")
    a("s_lshl_b32 s30, s30, 16")
    a(f"s_add_u32 s30, s30, {PBASE}")
    a("s_cmp_eq_u32 s10, 1")
    a("s_cbranch_scc0 L_c1")
    a(f"v_add_u32 v{VS+2}, s30, v{AH+1}")
    a.label("L_c1")
    a("s_waitcnt lgkmcnt(0)")
    a("s_mov_b32 s8, s6")
    a("s_mov_b32 s9, s7")
    srd(a, 24, 6, 7, WS_BYTES)
    srd(a, 20, 86, 87, O_BYTES)
    a(f"s_mov_b32 s32, {SLOT}")
    a(f"s_mov_b32 s33, {-(R-1)*SLOT & 0xffffffff}")
    a("s_mov_b32 s34, 0")
    a("s_movk_i32 s38, 4096")
    a("s_mov_b32 s40, 0")
    a("s_mov_b32 s35, 7")
    def adv(regs):
        return ["s_add_u32 s34, s34, 1", f"s_cmp_eq_u32 s34, {R}", "s_cselect_b32 s36, s33, s32",
                "s_cselect_b32 s34, 0, s34"] + [f"v_add_u32 v{r}, s36, v{r}" for r in regs]
    NOR = opt.get("nords"); NOM = opt.get("nomfma")
    def rdU(b):
        r = []
        for kk in range(2):
            fb = BUF[b] + 32*kk
            if NOR: continue
            r.append(f"ds_read_b128 {vr(fb,4)}, v{A1+kk} offset:0")
            for t in range(4):
                for hh in range(2):
                    r.append(f"ds_read_b64_tr_b16 {vr(fb+16+4*t+2*hh,2)}, v{AW+t} offset:{(32*kk+4*hh)*256}")
            for mi in range(1, 4):
                r.append(f"ds_read_b128 {vr(fb+4*mi,4)}, v{A1+kk} offset:{mi*2048}")
        return r + adv(range(A1, A1+6))
    def mmU(b, zero=False):
        m = []
        if NOM: return ["s_nop 0"]*8
        for kk in range(2):
            fb = BUF[b] + 32*kk
            for mi in range(4):
                for t in range(4):
                    acc = ACC + 4*(mi*4+t)
                    c = "0" if (zero and kk == 0) else vr(acc,4)
                    m.append(f"v_mfma_f32_16x16x32_bf16 {vr(acc,4)}, {vr(fb+16+4*t,4)}, {vr(fb+4*mi,4)}, {c}")
        return m
    def rdV(b):
        r = []
        for kk in range(2):
            fb = BUF[b] + 32*kk
            if NOR: continue
            r.append(f"ds_read_b128 {vr(fb,4)}, v{A1+kk} offset:0")
            for t in range(2):
                for hh in range(2):
                    r.append(f"ds_read_b64_tr_b16 {vr(fb+16+4*t+2*hh,2)}, v{AV+t} offset:{kk*8192+hh*512}")
            for mi in range(1, 4):
                r.append(f"ds_read_b128 {vr(fb+4*mi,4)}, v{A1+kk} offset:{mi*2048}")
        return r + adv([A1, A1+1, AV, AV+1])
    def mmV(b):
        m = []
        if NOM: return ["s_nop 0"]*8
        for kk in range(2):
            fb = BUF[b] + 32*kk
            for mi in range(4):
                for t in range(2):
                    acc = ACC + 4*(mi*2+t)
                    m.append(f"v_mfma_f32_16x16x32_bf16 {vr(acc,4)}, {vr(fb+16+4*t,4)}, {vr(fb+4*mi,4)}, {vr(acc,4)}")
        return m
    def convert(nunits, stride, zero):
        for q in range(nunits):
            acc = ACC + 8*q
            pk = PK + 4*(q % 8)
            for e in range(8):
                a(f"v_maximum3_f32 v{acc+e}, v{acc+e}, 0, 0")
            for e in range(4):
                a(f"v_cvt_pk_bf16_f32 v{pk+e}, v{acc+2*e}, v{acc+2*e+1}")
            off = q*stride
            so = "s38" if off >= 4096 else "0"
            if not opt.get("nostore"):
                a(f"buffer_store_dwordx4 {vr(pk,4)}, v{VS}, s[24:27], {so} offen offset:{off % 4096} {sf}")
            if q < zero:
                for e in range(8):
                    a(f"v_mov_b32 v{acc+e}, 0")
        a(f"v_mov_b32 v{VS}, v{VS+1}")
    def endstage():
        a("s_waitcnt lgkmcnt(0)")
        a("s_barrier")
    PERU = int(opt.get("peru", 1))
    mark(a, opt, 0)
    a("s_barrier")
    mark(a, opt, 1)
    for s in rdU(0): a(s)
    a("s_waitcnt vmcnt(0)")
    endstage()
    a.raw(".p2align 6")
    a.label("LU_first")
    for s in interleave(mmU(0, zero=True), rdU(1), per=PERU): a(s)
    endstage()
    a.label("LU_loop")
    for s in interleave(mmU(1), rdU(0), per=PERU): a(s)
    endstage()
    for s in interleave(mmU(0), rdU(1), per=PERU): a(s)
    a("s_sub_u32 s35, s35, 1")
    a("s_cmp_eq_u32 s35, 0")
    a("s_waitcnt vmcnt(0) lgkmcnt(0)")
    a("s_barrier")
    a("s_cbranch_scc0 LU_loop")
    for s in mmU(1): a(s)
    a("s_add_u32 s40, s40, 1")
    a("s_cmp_eq_u32 s40, 3")
    a("s_cbranch_scc1 L_final")
    mark(a, opt, 2)
    a("s_cmp_eq_u32 s10, 0")
    a("s_cbranch_scc1 L_toV")
    a("s_mov_b32 s35, 7")
    a("s_cmp_eq_u32 s40, 1")
    a("s_cbranch_scc1 L_rdU")
    a(f"s_mov_b32 s35, {KH//2-1}")
    a(f"v_add_u32 v{A1}, {(32 % R)*SLOT}, v{AH}")
    a(f"v_add_u32 v{A1+1}, {(32 % R)*SLOT+1024}, v{AH}")
    a.label("L_rdU")
    for s in rdU(0): a(s)
    a("s_branch L_cvU")
    a.label("L_toV")
    for s in rdV(0): a(s)
    a.label("L_cvU")
    convert(8, 1024, 4)
    a("s_cmp_eq_u32 s10, 0")
    endstage()
    a("s_cbranch_scc0 LU_first")
    a("s_mov_b32 s35, 8")
    a("s_branch LV_mid")
    a.raw(".p2align 6")
    a.label("LV_loop")
    for s in interleave(mmV(1), rdV(0), per=2): a(s)
    a("s_waitcnt vmcnt(0)")
    endstage()
    a.label("LV_mid")
    for s in interleave(mmV(0), rdV(1), per=2): a(s)
    a("s_sub_u32 s35, s35, 1")
    a("s_cmp_eq_u32 s35, 0")
    endstage()
    a("s_cbranch_scc0 LV_loop")
    for s in mmV(1): a(s)
    mark(a, opt, 3)
    a("s_mov_b32 s40, 2")
    a(f"s_mov_b32 s35, {KF//2-1}")
    a(f"v_add_u32 v{A1}, {(32 % R)*SLOT}, v{AH}")
    a(f"v_add_u32 v{A1+1}, {(32 % R)*SLOT+1024}, v{AH}")
    for t in range(4):
        a(f"v_add_u32 v{AW+t}, {((32 % R)-(16 % R))*SLOT}, v{AW+t}")
    for s in rdU(0): a(s)
    convert(4, 2048, 0)
    endstage()
    a("s_branch LU_first")
    a.label("L_final")
    mark(a, opt, 4)
    a("s_cmp_eq_u32 s10, 0")
    a("s_cbranch_scc1 L_finF")
    a("s_mov_b32 s39, 32768")
    a(f"s_mov_b32 s41, {32768+4096}")
    a("s_lshl_b32 s30, s11, 7")
    a("s_add_u32 s30, s30, s15")
    a(f"s_add_u32 s30, s30, {HDATA+384}")
    a("s_mov_b32 s31, 1")
    a("s_nop 3")
    for q in range(16):
        so = ["0", "s38", "s39", "s41"][q >> 2]
        a(f"buffer_store_dwordx4 {vr(ACC+4*q,4)}, v{VS+2}, s[24:27], {so} offen offset:{(q&3)*1024} {sf}")
    a("s_waitcnt vmcnt(0)")
    a("s_barrier")
    mark(a, opt, 5)
    a("s_cmp_eq_u32 s12, 0")
    a("s_cbranch_scc0 L_finH")
    a("s_atomic_add s31, s[6:7], s30")
    a.label("L_finH")
    stamp_end(a, opt, 0, 0, vt=64)
    a("s_endpgm")
    a.label("L_finF")
    sl0 = ((NF-2) % R)*SLOT; sl1 = ((NF-1) % R)*SLOT
    a(f"v_add_u32 v{T}, {sl0}, v{AH+1}")
    a(f"v_add_u32 v{T+1}, {sl1}, v{AH+1}")
    for q in range(8):
        a(f"ds_read_b128 {vr(BUF[0]+4*q,4)}, v{T} offset:{q*1024}")
    endstage()
    for q in range(8):
        a(f"ds_read_b128 {vr(BUF[0]+32+4*q,4)}, v{T+1} offset:{q*1024}")
    a("s_mov_b32 s32, 32768")
    a("s_mov_b32 s33, 65536")
    a("s_mov_b32 s34, 98304")
    of = opt.get("of", "")
    for mi in range(4):
        if mi == 2: a("s_waitcnt lgkmcnt(0)")
        for p in range(2):
            acc = ACC + 8*(mi*2+p)
            pk = PK + 4*(mi*2+p)
            for e in range(8):
                a(f"v_add_f32 v{acc+e}, v{acc+e}, v{BUF[0]+8*(mi*2+p)+e}")
            for e in range(4):
                a(f"v_cvt_pk_bf16_f32 v{pk+e}, v{acc+2*e}, v{acc+2*e+1}")
            a("s_nop 1")
            a(f"v_permlane16_swap_b32 v{pk}, v{pk+2}")
            a(f"v_permlane16_swap_b32 v{pk+1}, v{pk+3}")
            so = ["0", "s32", "s33", "s34"][mi]
            a(f"buffer_store_dwordx4 {vr(pk,4)}, v{VS+2}, s[20:23], {so} offen offset:{p*64} {of}")
    mark(a, opt, 5)
    a("s_branch L_finH")
    a.label("L_prod")
    a("s_sub_u32 s3, s12, 4")
    a("v_lshrrev_b32 v1, 3, v0")
    a("v_and_b32 v2, 7, v0")
    a("v_lshrrev_b32 v3, 4, v0")
    a("v_xor_b32 v2, v2, v3")
    a("s_lshl_b32 s28, s13, 7")
    a("s_lshl_b32 s29, s3, 5")
    a("s_add_u32 s28, s28, s29")
    a("v_add_u32 v1, s28, v1")
    a("v_lshlrev_b32 v1, 11, v1")
    a("v_lshl_add_u32 v8, v2, 4, v1")
    a("v_xor_b32 v9, 64, v8")
    a(f"v_add_u32 v9, {16384-1024}, v9")
    a(f"v_add_u32 v10, {32768-2048}, v8")
    a(f"v_add_u32 v11, {32768-2048}, v9")
    a("v_and_b32 v1, 15, v0")
    a("v_lshlrev_b32 v2, 1, v3")
    a("v_xor_b32 v4, v1, v2")
    a("s_movk_i32 s28, 7168")
    a("v_mul_u32_u24 v2, s28, v3")
    a("v_lshl_add_u32 v2, v4, 4, v2")
    a("s_mul_i32 s28, s3, %d" % (16*7168))
    a("s_lshl_b32 s29, s14, 8")
    a("s_add_u32 s29, s29, s28")
    a("v_add_u32 v12, s29, v2")
    a(f"v_add_u32 v13, {4*7168-1024}, v12")
    a("v_xor_b32 v14, 128, v12")
    a(f"v_add_u32 v14, {8*7168-2048}, v14")
    a(f"v_add_u32 v15, {4*7168-1024}, v14")
    a("s_lshl_b32 s30, s3, 12")
    a("s_add_u32 s31, s30, 16384")
    a("s_mov_b32 s34, 0")
    a("s_movk_i32 s36, 128")
    a(f"s_mov_b32 s37, {64*7168}")
    a("s_add_u32 s24, s13, s11")
    a("s_and_b32 s24, s24, 3")
    a("s_mov_b32 s88, 16")
    a("s_mov_b32 s25, 0")
    def first_stage():
        if ROT:
            a("s_sub_u32 s89, s88, 1")
            a("s_cmp_eq_u32 s24, 0")
            a("s_cselect_b32 s89, 3, s89")
            a("s_min_u32 s89, s89, s26")
            a("s_add_u32 s89, s89, s25")
        else:
            a("s_mov_b32 s89, s25")
        a("s_mul_i32 s32, s89, s36")
        a("s_mul_i32 s33, s89, s37")
        a("s_mov_b32 s89, 1")
    def next_stage():
        if ROT:
            a("s_sub_u32 s94, s89, s24")
            a("s_and_b32 s94, s94, 3")
            a("s_cselect_b32 s94, -1, 3")
            a("s_and_b32 s94, s94, s26")
            a("s_add_u32 s94, s94, s89")
            a("s_cmp_ge_u32 s94, s88")
            a("s_cselect_b32 s95, s88, 0")
            a("s_sub_u32 s94, s94, s95")
            a("s_add_u32 s94, s94, s25")
        else:
            a("s_add_u32 s94, s89, s25")
        if opt.get("small"): a("s_and_b32 s94, s94, 3")
        a("s_mul_i32 s95, s94, s37")
        a("s_mul_i32 s94, s94, s36")
        a("s_add_u32 s89, s89, 1")
    a("s_mov_b32 s26, -1")
    first_stage()
    a("s_mov_b32 m0, s30")
    a("s_mov_b32 s35, 0")
    a("s_waitcnt lgkmcnt(0)")
    a("s_mov_b32 s8, s6")
    a("s_mov_b32 s9, s7")
    srd(a, 16, 80, 81, X_BYTES)
    srd(a, 20, 82, 83, W_BYTES)
    def adv_slot():
        a(f"s_add_u32 s34, s34, {SLOT}")
        a(f"s_cmp_eq_u32 s34, {R*SLOT}")
        a("s_cselect_b32 s34, 0, s34")
        a("s_add_u32 s96, s30, s34")
    def issue(hooks, nend, main=False):
        hooks = [next_stage] + list(hooks)
        def hk():
            if hooks: hooks.pop(0)()
        for j in range(4):
            if not opt.get("noload"): a(f"buffer_load_dwordx4 v{8+j}, s[16:19], s32 offen offset:{j*1024} {lf1} lds")
            hk()
        a("s_add_u32 m0, s31, s34")
        adv_slot()
        order = [2, 3, 0, 1] if main else [0, 1, 2, 3]
        for n_, b in enumerate(order):
            if main and n_ == 0:
                a("s_cmp_eq_u32 s27, 1")
                a("s_cbranch_scc1 L_skipw")
            if main and n_ == 2:
                a.label("L_skipw")
            if n_ == 3:
                a("s_add_u32 s35, s35, 1")
                a(f"s_cmp_lt_u32 s35, {nend}")
            if not opt.get("noload"): a(f"buffer_load_dwordx4 v{12+b}, s[20:23], s33 offen offset:{b*1024} {lf2} lds")
        a("s_mov_b64 s[32:33], s[94:95]")
        a("s_mov_b32 m0, s96")
    NPRO = int(opt.get("npro", 2))
    a.label("LP_pro")
    issue([], NPRO)
    a("s_cbranch_scc1 LP_pro")
    srd(a, 44, 82, 83, W_BYTES)
    a(f"s_add_u32 s48, s15, {HDATA}")
    a("s_lshl_b32 s49, s13, 4")
    a("s_mov_b32 s50, 1")
    a("s_mov_b32 s51, 0")
    a("s_mov_b32 s93, 1")
    a("s_mov_b32 s52, s48")
    a(f"s_movk_i32 s56, {BIAS+16}")
    a("s_cmp_eq_u32 s3, 1")
    a(f"s_cselect_b32 s55, {16+D+5}, -1")
    a("s_cselect_b32 s91, 9, -1")
    a("s_cbranch_scc0 L_noinit")
    a("s_cmp_eq_u32 s14, 0")
    a("s_cbranch_scc0 L_noinit")
    IR = [27,40,41,42,43,97,98,99,100,101,90]
    for q in range(11):
        a(f"s_movk_i32 s{IR[q]}, {BIAS}")
        a(f"s_atomic_swap s{IR[q]}, s[6:7], s48 offset:{q*128} glc")
    a("s_waitcnt lgkmcnt(0)")
    a("s_atomic_add s93, s[4:5], s49")
    a.label("L_noinit")
    a("s_mov_b32 s27, 0")
    a("s_mov_b32 s40, 0")
    a("s_cmp_eq_u32 s3, 0")
    a(f"s_cselect_b32 s54, {16+D+5+1}, -1")
    a("s_mov_b32 s53, 16")
    a(f"s_mov_b32 s57, {NF}")
    a("s_cmp_eq_u32 s10, 1")
    a(f"s_cselect_b32 s57, {NH}, s57")
    a("v_lshrrev_b32 v1, 3, v0")
    a("v_and_b32 v2, 7, v0")
    a("v_and_b32 v5, 2, v1")
    a("v_xor_b32 v2, v2, v5")
    a("s_movk_i32 s29, 7168")
    a("v_mul_u32_u24 v1, s29, v1")
    a("v_lshl_add_u32 v1, v2, 4, v1")
    a("s_lshl_b32 s29, s11, 7")
    a("s_add_u32 s29, s29, s28")
    a("s_add_u32 s29, s29, 6144")
    a("v_add_u32 v16, s29, v1")
    a("v_xor_b32 v17, 64, v16")
    a(f"v_add_u32 v17, {8*7168-1024}, v17")
    a("s_add_u32 s29, s15, s30")
    a("v_lshl_add_u32 v20, v0, 4, s29")
    a("v_lshlrev_b32 v1, 11, v3")
    a("v_lshl_add_u32 v1, v4, 4, v1")
    a("s_lshr_b32 s28, s3, 1")
    a("s_lshl_b32 s28, s28, 16")
    a("s_and_b32 s29, s3, 1")
    a("s_lshl_b32 s29, s29, 14")
    a("s_add_u32 s28, s28, s29")
    a("s_lshl_b32 s29, s11, 8")
    a("s_add_u32 s28, s28, s29")
    a("v_add_u32 v21, s28, v1")
    a(f"v_add_u32 v22, {16*2048-1024}, v21")
    a("v_xor_b32 v23, 128, v21")
    a(f"v_add_u32 v23, {4*2048-2048}, v23")
    a(f"v_add_u32 v24, {16*2048-1024}, v23")
    a("s_lshl_b32 s28, s13, 3")
    a("s_add_u32 s28, s28, s11")
    a("s_lshl_b32 s28, s28, 16")
    a(f"s_add_u32 s28, s28, {PBASE}")
    a("s_add_u32 s28, s28, s30")
    a("v_lshl_add_u32 v25, v0, 4, s28")
    a("s_lshl_b32 s92, s2, 2")
    a("s_add_u32 s92, s92, s3")
    a("s_mul_i32 s38, s92, 7168")
    a("s_add_u32 s38, s38, 4096")
    a("s_movk_i32 s39, 256")
    a("s_lshl_b32 s92, s92, 8")
    a(f"s_mov_b32 s58, {4 if SPF else 0x7fffffff}")
    a("s_mov_b32 s59, 44")
    def h_spf():
        a("s_cmp_ge_u32 s35, s58")
        a("s_cbranch_scc0 L_nsp")
        a("s_cmp_lt_u32 s35, s59")
        a("s_cbranch_scc0 L_nsp")
        for q in range(4):
            a(f"s_buffer_load_dword s90, s[44:47], s38 offset:{q*64}")
        a("s_add_u32 s38, s38, s39")
        a.label("L_nsp")
    def h_arr():
        a("s_cmp_lg_u32 s35, s91")
        a("s_cbranch_scc1 L_nic")
        a("s_atomic_add s51, s[4:5], s49 glc")
        a.label("L_nic")
        a("s_cmp_lg_u32 s35, s55")
        a("s_cbranch_scc1 L_na")
        a.label("L_ic")
        a("s_cmp_eq_u32 s51, 1")
        a("s_cbranch_scc1 L_iok")
        a("s_waitcnt lgkmcnt(0)")
        a("s_cmp_eq_u32 s51, 1")
        a("s_cbranch_scc1 L_iok")
        a("s_mov_b32 s51, 0")
        a("s_atomic_add s51, s[4:5], s49 glc")
        a("s_branch L_ic")
        a.label("L_iok")
        a("s_atomic_add s93, s[6:7], s52")
        a("s_lshl_b32 s52, s10, 7")
        a("s_add_u32 s52, s52, s48")
        a("s_add_u32 s52, s52, 128")
        a(f"s_mov_b32 s55, {32+D+5}")
        a.label("L_na")
    def h_poll():
        a("s_cmp_ge_u32 s35, s54")
        a("s_cbranch_scc0 L_nq")
        a("s_cmp_eq_u32 s50, 0")
        a("s_cbranch_scc1 L_nq")
        a("s_cmp_eq_u32 s50, s56")
        a("s_cbranch_scc1 L_nq")
        a("s_mov_b32 s50, 0")
        a("s_atomic_add s50, s[6:7], s52 glc")
        a.label("L_nq")
    if NPRO < 4:
        a.label("LP_pro2")
        issue([], 4)
        a("s_cbranch_scc1 LP_pro2")
    a.raw(".p2align 6")
    a.label("LP")
    a("s_cmp_eq_u32 s35, s53")
    a("s_cbranch_scc1 L_seg")
    a.label("LP_go")
    a("s_cmp_lt_u32 s35, s40")
    a("s_cbranch_scc0 L_w24")
    a("s_waitcnt vmcnt(18)")
    a.label("L_w24")
    a("s_waitcnt vmcnt(24)")
    a("s_barrier")
    issue([h_spf, h_arr, h_poll], "s57", main=True)
    a("s_cbranch_scc1 LP")
    for n in range(3, -1, -1):
        a(f"s_waitcnt vmcnt({n*8})")
        a("s_barrier")
    a("s_cmp_eq_u32 s10, 1")
    a("s_cbranch_scc0 L_pend")
    a("s_barrier")
    a.label("L_pend")
    stamp_end(a, opt, 1, 4, vt=100)
    a.label("L_end")
    a("s_endpgm")
    a.label("L_seg")
    a("s_cmp_eq_u32 s35, 16")
    a("s_cbranch_scc0 L_segG")
    mark(a, opt, 0)
    a("s_mov_b32 s53, 32")
    a("s_mov_b32 s44, s84")
    a("s_and_b32 s45, s85, 0xffff")
    a("s_mov_b32 s38, s92")
    a(f"s_mov_b32 s39, {128*2048}")
    a("s_cmp_eq_u32 s10, 1")
    a("s_cbranch_scc0 L_segV")
    for b in range(4):
        a(f"v_add_u32 v{12+b}, 2048, v{12+b}")
    a("s_branch L_segdone")
    a.label("L_segV")
    a("v_mov_b32 v12, v16")
    a("v_mov_b32 v13, v17")
    a("s_mov_b32 s27, 1")
    a("s_mov_b32 s40, 36")
    a.label("L_segdone")
    first_stage()
    a("s_branch LP_go")
    a.label("L_segG")
    if opt.get("stamp"):
        a("s_cmp_eq_u32 s35, 32")
        a("s_cbranch_scc0 L_m5")
        mark(a, opt, 4)
        a("s_branch L_m7")
        a.label("L_m5")
        a(f"s_cmp_eq_u32 s35, {NF-2}")
        a("s_cbranch_scc1 L_m6")
        mark(a, opt, 5)
        a("s_branch L_m7")
        a.label("L_m6")
        mark(a, opt, 6)
        a.label("L_m7")
    a("s_cmp_eq_u32 s3, 0")
    a("s_cbranch_scc0 L_gok")
    a.label("L_g")
    a("s_cmp_eq_u32 s50, s56")
    a("s_cbranch_scc1 L_gok")
    a("s_waitcnt lgkmcnt(0)")
    a("s_cmp_eq_u32 s50, s56")
    a("s_cbranch_scc1 L_gok")
    a("s_mov_b32 s50, 0")
    a("s_atomic_add s50, s[6:7], s52 glc")
    a("s_branch L_g")
    a.label("L_gok")
    a("s_mov_b32 s50, 1")
    a("s_cmp_eq_u32 s35, 32")
    a("s_cbranch_scc0 L_seg3")
    mark(a, opt, 1)
    a("s_mov_b32 s27, 0")
    srd(a, 16, 6, 7, WS_BYTES)
    srd(a, 20, 84, 85, W_BYTES)
    for b in range(4):
        a(f"v_mov_b32 v{8+b}, v20")
        a(f"v_mov_b32 v{12+b}, v{21+b}")
    a("s_movk_i32 s36, 16384")
    a(f"s_mov_b32 s37, {64*2048}")
    a(f"s_mul_i32 s25, s10, {AF}")
    a("s_cmp_eq_u32 s10, 1")
    a(f"s_cselect_b32 s88, {32-AF}, {AF}")
    a("s_add_u32 s53, s88, 32")
    a(f"s_movk_i32 s56, {BIAS+8}")
    a("s_cmp_eq_u32 s3, 0")
    a("s_cbranch_scc0 L_segdone")
    a("s_lshl_b32 s52, s10, 7")
    a("s_sub_u32 s52, s48, s52")
    a("s_add_u32 s52, s52, 256")
    a("s_sub_u32 s54, s53, 7")
    a("s_branch L_segdone")
    a.label("L_seg3")
    a(f"s_cmp_eq_u32 s35, {NF-2}")
    a("s_cbranch_scc1 L_seg4")
    mark(a, opt, 2)
    a("s_cmp_eq_u32 s10, 1")
    a("s_cselect_b32 s25, 48, 32")
    a("s_cselect_b32 s88, 8, 16")
    a(f"s_mov_b32 s53, {NF-2}")
    a(f"s_movk_i32 s56, {BIAS+1}")
    a("s_cmp_eq_u32 s3, 0")
    a("s_cbranch_scc0 L_segdone")
    a("s_lshl_b32 s52, s11, 7")
    a("s_add_u32 s52, s52, s48")
    a("s_add_u32 s52, s52, 384")
    a(f"s_mov_b32 s54, {NF-2-8}")
    a("s_branch L_segdone")
    a.label("L_seg4")
    mark(a, opt, 3)
    srd(a, 20, 6, 7, WS_BYTES)
    for b in range(4):
        a(f"v_mov_b32 v{8+b}, v25")
        a(f"v_add_u32 v{12+b}, 16384, v25")
    a("s_mov_b32 s36, 32768")
    a("s_mov_b32 s37, 32768")
    a("s_mov_b32 s54, -1")
    a("s_mov_b32 s25, 0")
    a("s_mov_b32 s26, 0")
    a("s_branch L_segdone")

def build(opt):
    a = Asm()
    a.raw(HDR.rstrip())
    a.raw(f"; @launch grid=(256,1,1) block=(512,1,1) lds={LDS}")
    a.raw('.amdgcn_target "amdgcn-amd-amdhsa--gfx950"')
    a.raw(".text")
    fused(a, opt)
    a.raw('.section .rodata,"a"')
    a.raw(".p2align 6")
    kd(a, KNAME, 248, 102)
    return a.text()

if __name__ == "__main__":
    opt = {}
    out = sys.argv[1]
    for kv in sys.argv[2:]:
        k, v = kv.split("=", 1)
        opt[k] = v.replace("+", " ")
    open(out, "w").write(build(opt))
```

```python
import sys
from gen import Asm, vr, srd, interleave, HDR, X_BYTES, W_BYTES, O_BYTES, kd, STAMP_OFF
from gen2 import stamp_start, mark, stamp_end

KNAME = "standalone__dense_activation_relu__prompt_kernel"
SLOT = 32768
R = 5
LDS = R * SLOT
HDATA = 917504
HS = 921600
PBASE = 16 * HS
PS = 65536 + 1024
WS_BYTES = PBASE + 128 * PS
OOB = 0x7ff00000
BIAS = 0x100

def fused(a, opt):
    VPF = int(opt.get("vpf", 1))
    SPF = int(opt.get("spf", 1))
    ROT = int(opt.get("rot", 1))
    EX = int(opt.get("ex", 2))
    KF = 36 - EX
    KH = 20 + EX
    NF = 32 + KF + 2
    NH = 32 + KH
    LA = int(opt.get('la', 4))
    DU = int(opt.get('du', 3))
    DV = int(opt.get('dv', 4))
    sf = opt.get("sf", "sc1")
    lf1 = opt.get("lf1", "sc1")
    lf2 = opt.get("lf2", "")
    a.raw(f".globl {KNAME}")
    a.raw(".p2align 8")
    a.raw(f".type {KNAME},@function")
    a.label(KNAME)
    a("s_cmp_ge_u32 s2, 256")
    a("s_cbranch_scc1 L_end")
    stamp_start(a, opt)
    for _ in range(int(opt.get("delay", 0))): a("s_sleep 127")
    a("s_load_dwordx8 s[80:87], s[0:1], 0")
    a("s_load_dwordx4 s[4:7], s[0:1], 32")
    a("v_lshrrev_b32 v1, 6, v0")
    a("v_and_b32 v0, 63, v0")
    a("s_and_b32 s10, s2, 7")
    a("v_readfirstlane_b32 s12, v1")
    a("s_lshr_b32 s11, s2, 3")
    if opt.get("swapmn"):
        a("s_and_b32 s13, s11, 3")
        a("s_lshl_b32 s13, s13, 2")
        a("s_lshr_b32 s14, s11, 2")
        a("s_and_b32 s14, s14, 3")
        a("s_and_b32 s11, s11, 16")
        a("s_or_b32 s11, s11, s13")
        a("s_or_b32 s11, s11, s14")
    a("s_and_b32 s13, s10, 3")
    a("s_lshl_b32 s13, s13, 2")
    a("s_and_b32 s14, s11, 3")
    a("s_add_u32 s13, s13, s14")
    a("s_lshr_b32 s3, s10, 2")
    a("s_lshr_b32 s10, s11, 4")
    a("s_xor_b32 s14, s3, s10")
    a("s_lshl_b32 s14, s14, 2")
    a("s_lshr_b32 s11, s11, 2")
    a("s_and_b32 s11, s11, 3")
    a("s_add_u32 s11, s11, s14")
    DEC = int(opt.get("dec", 1))
    a("s_lshl_b32 s14, s10, 3")
    a("s_add_u32 s14, s14, s11")
    a("s_mov_b32 s88, s11")
    if DEC:
        a("s_lshl_b32 s89, s10, 1")
        a("s_or_b32 s89, s89, 1")
        a("s_xor_b32 s14, s14, s89")
        a("s_and_b32 s89, s11, 3")
        a("s_xor_b32 s89, s89, 3")
        a("s_lshl_b32 s89, s89, 1")
        a("s_lshr_b32 s88, s11, 2")
        a("s_add_u32 s89, s89, s88")
        a("s_xor_b32 s88, s11, 2")
        a("s_cmp_eq_u32 s10, 1")
        a("s_cselect_b32 s88, s88, s89")
    a(f"s_mul_i32 s15, s13, {HS}")
    a("s_cmp_ge_u32 s12, 4")
    a("s_cbranch_scc1 L_prod")
    ACC = 0
    BUF = [64, 128]
    A1 = 192
    AW = 194
    AV = 198
    AH = 200
    VS = 202
    VL = 205
    T = 206
    VP = 216
    VD = 220
    VA = 221
    V1 = 222
    PK = 224
    a(f"v_mov_b32 v{VL}, v0")
    if int(opt.get("cpf", 0)):
        a("s_getpc_b64 s[42:43]")
        a.label("L_pc")
        a("s_lshl_b32 s30, s12, 12")
        a(f"v_and_b32 v{T}, 31, v{VL}")
        a(f"v_lshl_add_u32 v{T}, v{T}, 7, s30")
        a(f"v_min_u32 v{T}, L_codeend-L_pc-4, v{T}")
        a(f"global_load_dword v{VP+1}, v{T}, s[42:43]")
    if VPF:
        a("s_lshl_b32 s30, s2, 14")
        a("s_lshl_b32 s31, s12, 13")
        a("s_add_u32 s30, s30, s31")
        a(f"v_lshl_add_u32 v{T}, v{VL}, 7, s30")
        a("s_lshl_b32 s30, s2, 1")
        a("s_add_u32 s30, s30, s12")
        a("s_sub_u32 s30, s30, 2")
        a("s_mul_i32 s30, s30, 14336")
        a(f"v_lshrrev_b32 v{T+1}, 5, v{VL}")
        a(f"v_mul_u32_u24 v{T+1}, {7168-4096}, v{T+1}")
        a(f"v_lshl_add_u32 v{T+2}, v{VL}, 7, s30")
        a("s_cmp_ge_u32 s12, 2")
        a("s_cbranch_scc0 L_vpf1")
        a(f"v_add_u32 v{T}, v{T+1}, v{T+2}")
        a.label("L_vpf1")
        a("s_waitcnt lgkmcnt(0)")
        a("s_cselect_b32 s44, s82, s80")
        a("s_cselect_b32 s45, s83, s81")
        a(f"s_mov_b32 s46, {X_BYTES}")
        a(f"s_cselect_b32 s46, {W_BYTES}, s46")
        a("s_and_b32 s45, s45, 0xffff")
        a("s_mov_b32 s47, 0x20000")
        a(f"buffer_load_dword v{VP}, v{T}, s[44:47], 0 offen")
    a("s_and_b32 s28, s12, 1")
    a("s_lshr_b32 s29, s12, 1")
    a(f"v_and_b32 v{T}, 15, v{VL}")
    a(f"v_lshrrev_b32 v{T+1}, 4, v{VL}")
    a(f"v_lshrrev_b32 v{T+2}, 1, v{T}")
    a(f"v_xor_b32 v{T+2}, v{T+1}, v{T+2}")
    a(f"v_lshlrev_b32 v{T+2}, 4, v{T+2}")
    a(f"v_lshl_add_u32 v{T+2}, v{T}, 7, v{T+2}")
    a("s_lshl_b32 s30, s28, 13")
    a(f"v_add_u32 v{A1}, s30, v{T+2}")
    a(f"v_xor_b32 v{A1+1}, 64, v{A1}")
    a(f"v_lshl_add_u32 v{AH}, v{VL}, 4, s30")
    a("s_lshl_b32 s30, s12, 13")
    a(f"v_lshl_add_u32 v{AH+1}, v{VL}, 4, s30")
    a(f"v_lshrrev_b32 v{T+2}, 2, v{VL}")
    a(f"v_and_b32 v{T+2}, 3, v{T+2}")
    a(f"v_lshl_add_u32 v{T+3}, v{T+1}, 3, v{T+2}")
    a(f"v_and_b32 v{T+4}, 3, v{VL}")
    a(f"v_lshlrev_b32 v{T+4}, 3, v{T+4}")
    a(f"v_add_u32 v{T+4}, 16384, v{T+4}")
    a(f"v_and_b32 v{T+5}, 1, v{T+1}")
    a(f"v_lshl_or_b32 v{T+6}, v{T+5}, 2, v{T+2}")
    a("s_lshl_b32 s30, s29, 2")
    a(f"v_xor_b32 v{T+6}, s30, v{T+6}")
    a(f"v_lshl_add_u32 v{T+3}, v{T+3}, 8, v{T+4}")
    a(f"v_lshl_add_u32 v{AW}, v{T+6}, 5, v{T+3}")
    for t in range(1, 4):
        a(f"v_xor_b32 v{AW+t}, {t*32}, v{AW}")
    a(f"v_lshrrev_b32 v{T+6}, 1, v{T+1}")
    a(f"v_lshl_add_u32 v{T+6}, v{T+6}, 12, v{T+4}")
    a(f"v_lshl_add_u32 v{T+3}, v{T+5}, 3, v{T+2}")
    a(f"v_lshl_add_u32 v{T+6}, v{T+3}, 7, v{T+6}")
    a(f"v_lshrrev_b32 v{T+3}, 1, v{T+2}")
    a(f"v_lshl_or_b32 v{T+3}, v{T+5}, 1, v{T+3}")
    a("s_lshl_b32 s30, s29, 1")
    a(f"v_xor_b32 v{T+3}, s30, v{T+3}")
    a(f"v_lshl_add_u32 v{AV}, v{T+3}, 5, v{T+6}")
    a(f"v_add_u32 v{AV}, {(16 % R)*SLOT}, v{AV}")
    a(f"v_xor_b32 v{AV+1}, 32, v{AV}")
    a("s_lshl_b32 s30, s28, 13")
    a("s_add_u32 s30, s30, s15")
    a("s_lshl_b32 s31, s14, 1")
    a("s_add_u32 s31, s31, s29")
    a("s_lshl_b32 s31, s31, 14")
    a("s_add_u32 s31, s31, s30")
    a(f"v_lshl_add_u32 v{VS}, v{VL}, 4, s31")
    a("s_lshl_b32 s31, s88, 1")
    a("s_add_u32 s31, s31, s29")
    a("s_lshl_b32 s31, s31, 14")
    a("s_add_u32 s31, s31, s30")
    a(f"s_add_u32 s31, s31, {32*16384}")
    a("s_lshl_b32 s36, s88, 14")
    a("s_add_u32 s36, s36, s30")
    a(f"s_add_u32 s36, s36, {48*16384}")
    a("s_lshl_b32 s37, s29, 10")
    a("s_add_u32 s36, s36, s37")
    a("s_cmp_eq_u32 s10, 1")
    a("s_cselect_b32 s31, s31, s36")
    a(f"v_lshl_add_u32 v{VS+1}, v{VL}, 4, s31")
    a("s_lshl_b32 s30, s13, 7")
    a("s_lshl_b32 s31, s28, 6")
    a("s_add_u32 s30, s30, s31")
    a(f"v_add_u32 v{T+2}, s30, v{T}")
    a(f"v_lshlrev_b32 v{T+2}, 11, v{T+2}")
    a(f"v_lshl_add_u32 v{T+2}, v{T+5}, 5, v{T+2}")
    a(f"v_lshrrev_b32 v{T+3}, 1, v{T+1}")
    a(f"v_lshl_add_u32 v{T+2}, v{T+3}, 4, v{T+2}")
    a("s_lshl_b32 s30, s11, 8")
    a("s_lshl_b32 s31, s29, 7")
    a("s_add_u32 s30, s30, s31")
    a(f"v_add_u32 v{VS+2}, s30, v{T+2}")
    a("s_lshl_b32 s30, s13, 3")
    a("s_add_u32 s30, s30, s11")
    a(f"s_mul_i32 s30, s30, {PS}")
    a(f"s_add_u32 s30, s30, {PBASE}")
    a("s_mov_b32 s49, s30")
    a("s_cmp_eq_u32 s10, 1")
    a("s_cbranch_scc0 L_c1")
    a(f"v_add_u32 v{VS+2}, s30, v{AH+1}")
    if opt.get("hnost"):
        a(f"v_mov_b32 v{VS}, {OOB}")
        a(f"v_mov_b32 v{VS+1}, {OOB}")
    a.label("L_c1")
    a("s_waitcnt lgkmcnt(0)")
    a("s_mov_b32 s8, s6")
    a("s_mov_b32 s9, s7")
    srd(a, 24, 6, 7, WS_BYTES)
    srd(a, 20, 86, 87, O_BYTES)
    if int(opt.get("tlb", 0)):
        a("s_cmp_eq_u32 s12, 0")
        a("s_cbranch_scc0 L_notlb")
        srd(a, 44, 84, 85, W_BYTES)
        a(f"v_lshlrev_b32 v{T}, {int(opt.get('tlbs', 17))}, v{VL}")
        a(f"buffer_load_dword v{VP}, v{T}, s[44:47], 0 offen")
        a("s_mov_b64 exec, 1")
        a(f"s_add_u32 s30, s15, {HDATA+3072}")
        a(f"v_mov_b32 v{T+1}, s30")
        a(f"buffer_load_dword v{VP+1}, v{T+1}, s[24:27], 0 offen")
        a(f"v_subrev_u32 v{T+2}, {HS}, v{T+1}")
        a(f"buffer_load_dword v{VP+2}, v{T+2}, s[24:27], 0 offen")
        a(f"s_add_u32 s30, s49, 65536")
        a(f"v_mov_b32 v{T+3}, s30")
        a(f"buffer_load_dword v{VP+3}, v{T+3}, s[24:27], 0 offen")
        a(f"v_subrev_u32 v{T+4}, {PS}, v{T+3}")
        a(f"buffer_load_dword v{VP+1}, v{T+4}, s[24:27], 0 offen")
        a(f"buffer_load_dword v{VP+2}, v{VS+2}, s[20:23], 0 offen")
        a("s_mov_b64 exec, -1")
        a.label("L_notlb")
    a(f"s_mov_b32 s32, {SLOT}")
    a(f"s_mov_b32 s33, {-(R-1)*SLOT & 0xffffffff}")
    a("s_mov_b32 s34, 0")
    a("s_movk_i32 s38, 4096")
    a("s_mov_b32 s40, 0")
    a("s_mov_b32 s35, 7")
    def adv(regs):
        return ["s_add_u32 s34, s34, 1", f"s_cmp_eq_u32 s34, {R}", "s_cselect_b32 s36, s33, s32",
                "s_cselect_b32 s34, 0, s34"] + [f"v_add_u32 v{r}, s36, v{r}" for r in regs]
    NOR = opt.get("nords"); NOM = opt.get("nomfma")
    def rdU(b):
        r = []
        for kk in range(2):
            fb = BUF[b] + 32*kk
            if NOR: continue
            r.append(f"ds_read_b128 {vr(fb,4)}, v{A1+kk} offset:0")
            for t in range(4):
                for hh in range(2):
                    r.append(f"ds_read_b64_tr_b16 {vr(fb+16+4*t+2*hh,2)}, v{AW+t} offset:{(32*kk+4*hh)*256}")
            for mi in range(1, 4):
                r.append(f"ds_read_b128 {vr(fb+4*mi,4)}, v{A1+kk} offset:{mi*2048}")
        return r + adv(range(A1, A1+6))
    def mmU(b, zero=False):
        m = []
        if NOM: return ["s_nop 0"]*8
        for kk in range(2):
            fb = BUF[b] + 32*kk
            for mi in range(4):
                for t in range(4):
                    acc = ACC + 4*(mi*4+t)
                    c = "0" if (zero and kk == 0) else vr(acc,4)
                    m.append(f"v_mfma_f32_16x16x32_bf16 {vr(acc,4)}, {vr(fb+16+4*t,4)}, {vr(fb+4*mi,4)}, {c}")
        return m
    def rdV(b):
        r = []
        for kk in range(2):
            fb = BUF[b] + 32*kk
            if NOR: continue
            r.append(f"ds_read_b128 {vr(fb,4)}, v{A1+kk} offset:0")
            for t in range(2):
                for hh in range(2):
                    r.append(f"ds_read_b64_tr_b16 {vr(fb+16+4*t+2*hh,2)}, v{AV+t} offset:{kk*8192+hh*512}")
            for mi in range(1, 4):
                r.append(f"ds_read_b128 {vr(fb+4*mi,4)}, v{A1+kk} offset:{mi*2048}")
        return r + adv([A1, A1+1, AV, AV+1])
    def mmV(b):
        m = []
        if NOM: return ["s_nop 0"]*8
        for kk in range(2):
            fb = BUF[b] + 32*kk
            for mi in range(4):
                for t in range(2):
                    acc = PK + 4*(mi*2+t)
                    m.append(f"v_mfma_f32_16x16x32_bf16 {vr(acc,4)}, {vr(fb+16+4*t,4)}, {vr(fb+4*mi,4)}, {vr(acc,4)}")
        return m
    def drain(tag, mask):
        a("s_cmp_ge_u32 s37, s42")
        a(f"s_cbranch_scc1 L_nd{tag}")
        a.label(f"L_d{tag}")
        a("s_set_gpr_idx_on s37, gpr_idx(SRC0)")
        a("s_nop 0")
        for e in range(8):
            a(f"v_maximum3_f32 v{T+e}, v{e}, 0, 0")
        a("s_set_gpr_idx_off")
        a("s_add_u32 s37, s37, 8")
        for e in range(4):
            a(f"v_cvt_pk_bf16_f32 v{VP+e}, v{T+2*e}, v{T+2*e+1}")
        if not opt.get("nostore"):
            a(f"buffer_store_dwordx4 {vr(VP,4)}, v{VS}, s[24:27], s39 offen {sf}")
        a("s_add_u32 s39, s39, s43")
        a(f"s_and_b32 s30, s37, {mask}")
        a(f"s_cbranch_scc1 L_d{tag}")
        a.label(f"L_nd{tag}")
    def endstage():
        a("s_waitcnt lgkmcnt(0)")
        a("s_barrier")
    PERU = int(opt.get("peru", 1))
    _il = interleave
    def interleave2(m, o, per=1):
        if not opt.get("il2") or per != 1: return _il(m, o, per=per)
        groups = []
        i = 0
        while i < len(o):
            if i+1 < len(o) and ((o[i].startswith("ds_read_b64_tr") and o[i+1].startswith("ds_read_b64_tr")) or (opt["il2"] == "2" and o[i].startswith("s_") and o[i+1].startswith("s_"))):
                groups.append(o[i:i+2]); i += 2
            else:
                groups.append([o[i]]); i += 1
        out = []
        for k, x in enumerate(m):
            out.append(x)
            if k < len(groups): out.extend(groups[k])
        for g in groups[len(m):]: out.extend(g)
        return out
    for i in range(32):
        a(f"v_mov_b32 v{PK+i}, 0")
    a(f"v_mov_b32 v{VD}, {OOB}")
    a(f"v_mov_b32 v{VA}, {OOB}")
    a(f"v_mov_b32 v{V1}, 1")
    a("s_lshl_b32 s48, s10, 7")
    a("s_add_u32 s48, s48, s15")
    a(f"s_add_u32 s48, s48, {HDATA}")
    a("s_cmp_eq_u32 s10, 1")
    for q in range(4):
        a(f"s_movk_i32 s{44+q}, {q*2048}")
        a(f"s_cselect_b32 s{44+q}, {4096+q*1024}, s{44+q}")
    if opt.get("cprio"): a(f"s_setprio {opt['cprio']}")
    mark(a, opt, 0)
    a("s_barrier")
    mark(a, opt, 1)
    for s in rdU(0): a(s)
    a("s_waitcnt vmcnt(0)")
    endstage()
    a.raw(".p2align 6")
    a.label("LU_first")
    a(f"s_mov_b32 s41, {(DU-3)//2}")
    dr = []
    for q in range(4):
        for e in range(8):
            dr.append(f"v_maximum3_f32 v{PK+8*q+e}, v{PK+8*q+e}, 0, 0")
        for e in range(4):
            dr.append(f"v_cvt_pk_bf16_f32 v{PK+8*q+e}, v{PK+8*q+2*e}, v{PK+8*q+2*e+1}")
        if not opt.get("nostore"):
            dr.append(f"buffer_store_dwordx4 {vr(PK+8*q,4)}, v{VD}, s[24:27], s{44+q} offen {sf}")
    base = interleave2(mmU(0, zero=True), rdU(1), per=PERU)
    out = []; nm = 0
    for x in base:
        if x.startswith("v_mfma") or x == "s_nop 0":
            nm += 1
            if nm > 2:
                for _ in range(2):
                    if dr: out.append(dr.pop(0))
        out.append(x)
    out += dr
    for s in out: a(s)
    endstage()
    a.label("LU_loop")
    for s in interleave2(mmU(1), rdU(0), per=PERU): a(s)
    endstage()
    for s in interleave2(mmU(0), rdU(1), per=PERU): a(s)
    a("s_sub_u32 s41, s41, 1")
    a("s_cbranch_scc0 L_nwU")
    a("s_waitcnt vmcnt(0)")
    a("s_mov_b64 exec, 1")
    a(f"buffer_atomic_add v{V1}, v{VA}, s[24:27], 0 offen sc1")
    a("s_mov_b64 exec, -1")
    a.label("L_nwU")
    a("s_sub_u32 s35, s35, 1")
    a("s_cmp_eq_u32 s35, 0")
    endstage()
    a("s_cbranch_scc0 LU_loop")
    a("s_add_u32 s40, s40, 1")
    a("s_cmp_eq_u32 s40, 3")
    a("s_cbranch_scc1 L_final")
    mark(a, opt, 2)
    a(f"v_mov_b32 v{VA}, s48")
    a("s_add_u32 s48, s48, 256")
    a("s_cmp_eq_u32 s10, 0")
    a("s_cbranch_scc1 L_toV")
    a("s_mov_b32 s35, 7")
    a("s_cmp_eq_u32 s40, 1")
    a("s_cbranch_scc1 L_rdU")
    a(f"s_mov_b32 s35, {KH//2-1}")
    a(f"v_add_u32 v{A1}, {(32 % R)*SLOT}, v{AH}")
    a(f"v_add_u32 v{A1+1}, {(32 % R)*SLOT+1024}, v{AH}")
    a(f"v_mov_b32 v{VS}, v{VS+1}")
    a.label("L_rdU")
    for s in rdU(0): a(s)
    a("s_branch L_bmm")
    a.label("L_toV")
    for s in rdV(0): a(s)
    a.label("L_bmm")
    mm = mmU(1)
    if not NOM:
        mm = [mm[k] for t in range(16) for k in (t, 16+t)]
    cv = []
    for q in range(4):
        acc = ACC + 8*q
        for e in range(8):
            cv.append(f"v_maximum3_f32 v{acc+e}, v{acc+e}, 0, 0")
        for e in range(4):
            cv.append(f"v_cvt_pk_bf16_f32 v{acc+e}, v{acc+2*e}, v{acc+2*e+1}")
        if not opt.get("nostore"):
            cv.append(f"buffer_store_dwordx4 {vr(acc,4)}, v{VS}, s[24:27], 0 offen offset:{q*1024} {sf}")
    for s in interleave(mm, cv, start=12, per=2): a(s)
    a("s_cmp_eq_u32 s10, 0")
    a("s_cbranch_scc1 L_toV2")
    a(f"v_mov_b32 v{VD}, v{VS}")
    for i in range(32):
        a(f"v_mov_b32 v{PK+i}, v{ACC+32+i}")
    endstage()
    a("s_branch LU_first")
    a.label("L_toV2")
    a("s_mov_b32 s35, 8")
    a(f"s_mov_b32 s41, {(DV-2)//2}")
    a("s_mov_b32 s37, 32")
    a("s_mov_b32 s42, 64")
    a("s_movk_i32 s39, 4096")
    a("s_movk_i32 s43, 1024")
    endstage()
    a("s_branch LV_mid")
    a.raw(".p2align 6")
    a.label("LV_loop")
    for s in interleave2(mmV(1), rdV(0), per=2): a(s)
    drain("V2", 15)
    a("s_sub_u32 s41, s41, 1")
    a("s_cbranch_scc0 L_nwV")
    a("s_waitcnt vmcnt(0)")
    a("s_mov_b64 exec, 1")
    a(f"buffer_atomic_add v{V1}, v{VA}, s[24:27], 0 offen sc1")
    a("s_mov_b64 exec, -1")
    a.label("L_nwV")
    endstage()
    a.label("LV_mid")
    for s in interleave2(mmV(0), rdV(1), per=2): a(s)
    drain("V", 15)
    a("s_sub_u32 s35, s35, 1")
    a("s_cmp_eq_u32 s35, 0")
    endstage()
    a("s_cbranch_scc0 LV_loop")
    mark(a, opt, 3)
    a("s_mov_b32 s40, 2")
    a(f"s_mov_b32 s35, {KF//2-1}")
    a(f"v_add_u32 v{A1}, {(32 % R)*SLOT}, v{AH}")
    a(f"v_add_u32 v{A1+1}, {(32 % R)*SLOT+1024}, v{AH}")
    for t in range(4):
        a(f"v_add_u32 v{AW+t}, {((32 % R)-(16 % R))*SLOT}, v{AW+t}")
    a(f"v_mov_b32 v{VD}, v{VS+1}")
    a(f"v_mov_b32 v{VA}, s48")
    for s in interleave2(mmV(1), rdU(0), per=2): a(s)
    endstage()
    a("s_branch LU_first")
    a.label("L_final")
    mmt = mmU(1)
    if not NOM:
        mmt = [mmt[k] for t in range(16) for k in (t, 16+t)]
    else:
        mmt = ["s_nop 0"]*32
    a("s_cmp_eq_u32 s10, 0")
    a("s_cbranch_scc1 L_finF")
    a("s_mov_b32 s39, 32768")
    a(f"s_mov_b32 s41, {32768+4096}")
    a("s_lshl_b32 s30, s11, 7")
    a("s_add_u32 s30, s30, s15")
    a(f"s_add_u32 s30, s30, {HDATA+512}")
    a(f"v_mov_b32 v{VA}, s30")
    st = []
    for q in range(16):
        so = ["0", "s38", "s39", "s41"][q >> 2]
        st.append(f"buffer_store_dwordx4 {vr(ACC+4*q,4)}, v{VS+2}, s[24:27], {so} offen offset:{(q&3)*1024} {sf}")
    for k, x in enumerate(mmt):
        a(x)
        if k >= 11 and (k & 1): a(st.pop(0))
    mark(a, opt, 4)
    a("s_nop 7")
    for x in st: a(x)
    a("s_waitcnt vmcnt(0)")
    a("s_mov_b64 exec, 1")
    a(f"buffer_atomic_add v{V1}, v{VA}, s[24:27], 0 offen sc1")
    a("s_mov_b64 exec, -1")
    mark(a, opt, 5)
    a.label("L_finH")
    stamp_end(a, opt, 0, 0, vt=64)
    a("s_endpgm")
    a.label("L_finF")
    sl0 = ((NF-2) % R)*SLOT; sl1 = ((NF-1) % R)*SLOT
    a(f"v_add_u32 v{T}, {sl0}, v{AH+1}")
    a(f"v_add_u32 v{T+1}, {sl1}, v{AH+1}")
    a("s_mov_b32 s32, 32768")
    a("s_mov_b32 s33, 65536")
    a("s_mov_b32 s34, 98304")
    of = opt.get("of", "")
    def fin(u):
        mi, p = u >> 1, u & 1
        acc = ACC + 8*u; pk = PK + 4*u; r = []
        for e in range(8):
            r.append(f"v_add_f32 v{acc+e}, v{acc+e}, v{BUF[0]+8*u+e}")
        for e in range(4):
            r.append(f"v_cvt_pk_bf16_f32 v{pk+e}, v{acc+2*e}, v{acc+2*e+1}")
        r.append("s_nop 1")
        r.append(f"v_permlane16_swap_b32 v{pk}, v{pk+2}")
        r.append(f"v_permlane16_swap_b32 v{pk+1}, v{pk+3}")
        so = ["0", "s32", "s33", "s34"][mi]
        r.append(f"buffer_store_dwordx4 {vr(pk,4)}, v{VS+2}, s[20:23], {so} offen offset:{p*64} {of}")
        return r
    p0 = [f"ds_read_b128 {vr(BUF[0]+4*q,4)}, v{T} offset:{q*1024}" for q in range(8)]
    p1 = [f"ds_read_b128 {vr(BUF[0]+32+4*q,4)}, v{T+1} offset:{q*1024}" for q in range(8)]
    for x in interleave(mmt[:16], p0): a(x)
    a("s_waitcnt lgkmcnt(0)")
    for x in interleave(mmt[16:], fin(0)+fin(1)+fin(2), per=3): a(x)
    mark(a, opt, 4)
    a("s_barrier")
    for x in p1: a(x)
    for x in fin(3): a(x)
    a("s_waitcnt lgkmcnt(0)")
    for u in range(4, 8):
        for x in fin(u): a(x)
    mark(a, opt, 5)
    a("s_branch L_finH")
    a.label("L_prod")
    a("s_mov_b32 s41, s3")
    a("s_sub_u32 s3, s12, 4")
    a("v_lshrrev_b32 v1, 3, v0")
    a("v_and_b32 v2, 7, v0")
    a("v_lshrrev_b32 v3, 4, v0")
    a("v_xor_b32 v2, v2, v3")
    a("s_lshl_b32 s28, s13, 7")
    a("s_lshl_b32 s29, s3, 5")
    a("s_add_u32 s28, s28, s29")
    a("v_add_u32 v1, s28, v1")
    a("v_lshlrev_b32 v1, 11, v1")
    a("v_lshl_add_u32 v8, v2, 4, v1")
    a("v_xor_b32 v9, 64, v8")
    a(f"v_add_u32 v9, {16384-1024}, v9")
    a(f"v_add_u32 v10, {32768-2048}, v8")
    a(f"v_add_u32 v11, {32768-2048}, v9")
    a("v_and_b32 v1, 15, v0")
    a("v_lshlrev_b32 v2, 1, v3")
    a("v_xor_b32 v4, v1, v2")
    a("s_movk_i32 s28, 7168")
    a("v_mul_u32_u24 v2, s28, v3")
    a("v_lshl_add_u32 v2, v4, 4, v2")
    a("s_mul_i32 s28, s3, %d" % (16*7168))
    a("s_lshl_b32 s29, s14, 8")
    a("s_add_u32 s29, s29, s28")
    a("v_add_u32 v12, s29, v2")
    a(f"v_add_u32 v13, {4*7168-1024}, v12")
    a("v_xor_b32 v14, 128, v12")
    a(f"v_add_u32 v14, {8*7168-2048}, v14")
    a(f"v_add_u32 v15, {4*7168-1024}, v14")
    a("s_lshl_b32 s30, s3, 12")
    a("s_add_u32 s40, s13, s11")
    a("s_and_b32 s40, s40, 3")
    a("s_getpc_b64 s[42:43]")
    a.label("L_pc2")
    a("s_lshl_b32 s29, s10, 1")
    a("s_add_u32 s29, s29, s41")
    a("s_lshl_b32 s29, s29, 2")
    a("s_add_u32 s29, s29, s40")
    a("s_lshl_b32 s29, s29, 6")
    a("s_add_u32 s29, s29, L_tab-L_pc2")
    a("v_add_u32 v6, s29, v0")
    a("global_load_ubyte v46, v6, s[42:43]")
    def tab_delta(vs, vd):
        a(f"v_subrev_u32 v{vd}, s40, v{vs}")
        a(f"v_and_b32 v{vd}, 3, v{vd}")
        a(f"v_cmp_eq_u32 vcc, 0, v{vd}")
        a(f"v_mov_b32 v{vd}, {-1 if ROT else 0}")
        a("s_nop 0")
        a(f"v_cndmask_b32 v{vd}, v{vd}, {3 if ROT else 0}, vcc")
    def tab_m0(vs, vd):
        a(f"v_mul_u32_u24 v{vd}, 13108, v{vs}")
        a(f"v_lshrrev_b32 v{vd}, 16, v{vd}")
        a(f"v_mul_u32_u24 v{vd}, 5, v{vd}")
        a(f"v_sub_u32 v{vd}, v{vs}, v{vd}")
        a(f"v_lshl_add_u32 v{vd}, v{vd}, 15, s30")
    tab_delta(0, 5)
    a("v_add_u32 v5, v5, v0")
    a(f"v_and_b32 v5, {3 if opt.get('small') else 15}, v5")
    a("v_lshlrev_b32 v40, 7, v5")
    a(f"v_mul_u32_u24 v41, {64*7168//1024}, v5")
    a("v_lshlrev_b32 v41, 10, v41")
    tab_m0(0, 42)
    a("s_mov_b32 s35, 0")
    a("v_readlane_b32 s32, v40, 0")
    a("v_readlane_b32 s33, v41, 0")
    a("s_mov_b32 m0, s30")
    a("s_waitcnt lgkmcnt(0)")
    a("s_mov_b32 s8, s6")
    a("s_mov_b32 s9, s7")
    srd(a, 16, 80, 81, X_BYTES)
    srd(a, 20, 82, 83, W_BYTES)
    NOL = opt.get("noload")
    def body(n2, spf, nend, trace=False, tag=None):
        def ld1(j):
            if not NOL: a(f"buffer_load_dwordx4 v{8+j}, s[16:19], s32 offen offset:{j*1024} {lf1} lds")
        def ld2(b):
            if not NOL: a(f"buffer_load_dwordx4 v{12+b}, s[20:23], s33 offen offset:{b*1024} {lf2} lds")
        if trace and opt.get("trace"):
            a("s_sub_u32 s76, s78, s62")
            a("s_sub_u32 s77, s35, 7")
            a("s_max_i32 s77, s77, 0")
            a("v_cmp_eq_u32 vcc, s77, v0")
            a("v_mov_b32 v62, s76")
            a("s_nop 0")
            a("v_cndmask_b32 v60, v60, v62, vcc")
            a("s_memtime s[78:79]")
        ld1(0)
        if tag:
            a("s_cmp_eq_u32 s35, s43")
            a("s_cbranch_scc1 L_pv")
            a.label(f"L_pvret{tag}")
        a("s_add_u32 s35, s35, 1")
        if spf:
            a("s_buffer_load_dword s90, s[44:47], s38 offset:0")
            a("s_buffer_load_dword s90, s[44:47], s38 offset:64")
        ld1(1)
        a("v_readlane_b32 s94, v40, s35")
        if spf:
            a("s_buffer_load_dword s90, s[44:47], s38 offset:128")
            a("s_buffer_load_dword s90, s[44:47], s38 offset:192")
        ld1(2)
        a("v_readlane_b32 s95, v41, s35")
        if spf: a("s_add_u32 s38, s38, s39")
        ld1(3)
        a("s_add_u32 m0, m0, 16384")
        a("v_readlane_b32 s96, v42, s35")
        for b in range(n2):
            if b == n2-1: a(f"s_cmp_lt_u32 s35, {nend}")
            ld2(b)
        a("s_mov_b64 s[32:33], s[94:95]")
        a("s_mov_b32 m0, s96")
    a.label("LP_pro")
    body(4, False, LA-1)
    a("s_cbranch_scc1 LP_pro")
    a("s_mov_b32 s1, s41")
    srd(a, 44, 82, 83, W_BYTES)
    a(f"s_add_u32 s48, s15, {HDATA}")
    a("s_lshl_b32 s49, s13, 4")
    a("s_mov_b32 s93, 1")
    a("s_cmp_eq_u32 s3, 1")
    a("s_cbranch_scc0 L_noinit")
    a("s_cmp_eq_u32 s14, 0")
    a("s_cbranch_scc0 L_noinit")
    IR = [42,43,101,90,38,39,97,98,99,100,29,59]
    for q in range(12):
        a(f"s_movk_i32 s{IR[q]}, {BIAS}")
        a(f"s_atomic_swap s{IR[q]}, s[6:7], s48 offset:{q*128} glc")
    a("s_waitcnt lgkmcnt(0)")
    a("s_atomic_add s93, s[4:5], s49")
    a.label("L_noinit")
    a("s_mov_b32 s50, 1")
    a("s_mov_b32 s51, 0")
    a("s_mov_b32 s52, s48")
    a(f"s_movk_i32 s56, {BIAS+32}")
    a("s_cmp_eq_u32 s10, 1")
    a("s_mov_b32 s55, 13")
    a(f"s_cselect_b32 s57, {51 if EX == 0 else NF-3}, 0")
    a(f"s_cselect_b32 s42, {NH}, {NF-2}")
    a(f"s_mov_b32 s54, {int(opt.get('pw', 25))}")
    a("s_mov_b32 s97, 31")
    a("s_add_u32 s91, s3, 15")
    a("s_cmp_eq_u32 s3, 0")
    a("s_cselect_b32 s43, 9, s91")
    a("s_cselect_b32 s54, s54, -1")
    a("s_cselect_b32 s55, s55, -1")
    a("s_cselect_b32 s97, s97, -1")
    a("s_mov_b32 s53, 16")
    a("s_mov_b32 s31, 0")
    srd(a, 24, 6, 7, WS_BYTES)
    a("s_sub_u32 s29, s88, s14")
    a("s_lshl_b32 s29, s29, 8")
    a("s_add_u32 s29, s29, 4096")
    for b in range(4):
        a(f"v_add_u32 v{16+b}, s29, v{12+b}")
    a("s_cmp_eq_u32 s10, 1")
    a("s_cbranch_scc1 L_nov")
    a("v_lshrrev_b32 v1, 3, v0")
    a("v_and_b32 v2, 7, v0")
    a("v_and_b32 v5, 2, v1")
    a("v_xor_b32 v2, v2, v5")
    a("s_movk_i32 s29, 7168")
    a("v_mul_u32_u24 v1, s29, v1")
    a("v_lshl_add_u32 v1, v2, 4, v1")
    a("s_lshl_b32 s29, s88, 7")
    a("s_add_u32 s29, s29, s28")
    a("s_add_u32 s29, s29, 6144")
    a("v_add_u32 v16, s29, v1")
    a("v_xor_b32 v17, 64, v16")
    a(f"v_add_u32 v17, {8*7168-1024}, v17")
    a.label("L_nov")
    a("s_add_u32 s29, s15, s30")
    a("v_lshl_add_u32 v20, v0, 4, s29")
    a("v_lshlrev_b32 v1, 11, v3")
    a("v_lshl_add_u32 v1, v4, 4, v1")
    a("s_lshr_b32 s28, s3, 1")
    a("s_lshl_b32 s28, s28, 16")
    a("s_and_b32 s29, s3, 1")
    a("s_lshl_b32 s29, s29, 14")
    a("s_add_u32 s28, s28, s29")
    a("s_lshl_b32 s29, s11, 8")
    a("s_add_u32 s28, s28, s29")
    a("v_add_u32 v21, s28, v1")
    a(f"v_add_u32 v22, {16*2048-1024}, v21")
    a("v_xor_b32 v23, 128, v21")
    a(f"v_add_u32 v23, {4*2048-2048}, v23")
    a(f"v_add_u32 v24, {16*2048-1024}, v23")
    a("s_lshl_b32 s28, s13, 3")
    a("s_add_u32 s28, s28, s11")
    a(f"s_mul_i32 s28, s28, {PS}")
    a(f"s_add_u32 s28, s28, {PBASE}")
    a("s_add_u32 s28, s28, s30")
    a("v_lshl_add_u32 v25, v0, 4, s28")
    a("v_add_u32 v1, 64, v0")
    a("v_cmp_gt_u32 vcc, 4, v0")
    a("s_lshl_b32 s92, s2, 2")
    a("s_add_u32 s92, s92, s3")
    a("v_cndmask_b32 v1, v0, v1, vcc")
    tab_m0(1, 42)
    a(f"s_waitcnt vmcnt({8*(LA-1) if not NOL else 0})")
    if opt.get("small"): a("v_and_b32 v46, 3, v46")
    a("v_lshlrev_b32 v43, 14, v46")
    a("v_lshlrev_b32 v44, 17, v46")
    a("v_cmp_gt_u32 vcc, 32, v1")
    a("s_mul_i32 s38, s92, 7168")
    a("s_add_u32 s38, s38, 4096")
    a("v_cndmask_b32 v40, v43, v40, vcc")
    a("v_cndmask_b32 v41, v44, v41, vcc")
    a("s_movk_i32 s39, 256")
    a("s_lshl_b32 s92, s92, 8")
    if not SPF: a("s_mov_b32 s46, 0")
    if SPF == 2:
        a("s_cmp_eq_u32 s3, 0")
        a("s_cselect_b32 s46, 0, s46")
    if opt.get("pprio"): a(f"s_setprio {opt['pprio']}")
    WU = 8*(LA-2); WV = 6*(LA-2)
    a.raw(".p2align 6")
    a.label("LP")
    a(f"s_waitcnt vmcnt({WU})")
    a("s_barrier")
    body(4, True, "s53", trace=True, tag="U")
    a("s_cbranch_scc1 LP")
    a("s_cmp_eq_u32 s35, 16")
    a("s_cbranch_scc0 L_e32")
    mark(a, opt, 0)
    for b in range(4):
        a(f"v_mov_b32 v{12+b}, v{16+b}")
    a("s_mov_b32 s53, 32")
    a("s_xor_b32 s31, s10, 1")
    a("s_cbranch_scc0 LP")
    a.label("LPV")
    a(f"s_waitcnt vmcnt({WV})")
    a("s_barrier")
    body(2, True, "s53", trace=True, tag="V")
    a("s_cbranch_scc1 LPV")
    a(f"s_waitcnt vmcnt(6)")
    a.label("L_e32")
    a("s_cmp_eq_u32 s35, 32")
    a("s_cbranch_scc0 L_pdone")
    mark(a, opt, 1)
    for b in range(4):
        a(f"v_mov_b32 v{8+b}, v20")
        a(f"v_mov_b32 v{12+b}, v{21+b}")
    a("s_mov_b64 s[16:17], s[24:25]")
    a("s_mov_b32 s18, s26")
    a("s_mov_b64 s[20:21], s[44:45]")
    a("s_mov_b32 s31, 0")
    a("s_mov_b32 s53, s42")
    a("s_branch LP")
    a.label("L_pv")
    a("s_cmp_eq_u32 s35, s91")
    a("s_cbranch_scc0 L_pv0")
    a("s_mov_b32 s44, s84")
    a("s_and_b32 s45, s85, 0xffff")
    a("s_mov_b32 s38, s92")
    a(f"s_mov_b32 s39, {128*2048}")
    a("s_mov_b32 s91, -1")
    a.label("L_pv0")
    a("s_cmp_eq_u32 s35, 9")
    a("s_cbranch_scc0 L_pv1")
    a("s_atomic_add s51, s[4:5], s49 glc")
    a.label("L_pv1")
    a("s_cmp_eq_u32 s35, s55")
    a("s_cbranch_scc0 L_pv2")
    a.label("L_ic")
    a("s_cmp_eq_u32 s51, 1")
    a("s_cbranch_scc1 L_iok")
    a("s_waitcnt lgkmcnt(0)")
    a("s_cmp_eq_u32 s51, 1")
    a("s_cbranch_scc1 L_iok")
    a("s_mov_b32 s51, 0")
    a("s_atomic_add s51, s[4:5], s49 glc")
    a("s_branch L_ic")
    a.label("L_iok")
    a("s_mov_b32 s55, -1")
    a.label("L_pv2")
    a("s_cmp_eq_u32 s35, s97")
    a("s_cbranch_scc1 L_gate")
    a("s_cmp_ge_u32 s35, s54")
    a("s_cbranch_scc0 L_pv4")
    a("s_cmp_eq_u32 s50, s56")
    a("s_cbranch_scc1 L_pv3")
    a("s_add_u32 s54, s35, 1")
    a("s_cmp_eq_u32 s50, 0")
    a("s_cbranch_scc1 L_pv4")
    a("s_mov_b32 s50, 0")
    a("s_atomic_add s50, s[6:7], s52 glc")
    a("s_branch L_pv4")
    a.label("L_pv3")
    a("s_mov_b32 s54, -1")
    a.label("L_pv4")
    a("s_min_u32 s43, s54, s55")
    a("s_min_u32 s43, s43, s97")
    a("s_min_u32 s43, s43, s91")
    a("s_cmp_eq_u32 s31, 0")
    a("s_cbranch_scc1 L_pvretU")
    a("s_branch L_pvretV")
    a.label("L_gate")
    a("s_cmp_eq_u32 s50, s56")
    a("s_cbranch_scc1 L_gok")
    a("s_waitcnt lgkmcnt(0)")
    a("s_cmp_eq_u32 s50, s56")
    a("s_cbranch_scc1 L_gok")
    a("s_mov_b32 s50, 0")
    a("s_atomic_add s50, s[6:7], s52 glc")
    a("s_branch L_gate")
    a.label("L_gok")
    a("s_add_u32 s52, s52, 128")
    a("s_mov_b32 s50, 1")
    a("s_add_u32 s97, s35, 8")
    a("s_min_u32 s97, s97, 51")
    a("s_add_u32 s54, s35, 1")
    a("s_cmp_lt_u32 s35, 51")
    a("s_cbranch_scc1 L_gk2")
    a("s_lshl_b32 s29, s11, 7")
    a("s_add_u32 s52, s52, s29")
    a(f"s_movk_i32 s56, {BIAS+4}")
    a("s_cmp_eq_u32 s35, 51")
    a(f"s_cselect_b32 s97, {NF-3}, -1")
    a(f"s_cselect_b32 s54, {NF-3-6}, -1")
    a.label("L_gk2")
    a("s_cmp_eq_u32 s97, s57")
    a("s_cselect_b32 s97, -1, s97")
    a("s_cselect_b32 s54, -1, s54")
    a("s_branch L_pv4")
    a.label("L_pdone")
    mark(a, opt, 4)
    a("s_cmp_eq_u32 s10, 1")
    a("s_cbranch_scc1 L_ptail")
    a("s_mov_b32 s32, 0")
    for e in range(2):
        a(f"s_add_u32 m0, s30, {((NF-2+e) % R)*SLOT}")
        a(f"s_waitcnt vmcnt({WU})")
        a("s_barrier")
        for h in range(2):
            for j in range(4):
                if not NOL: a(f"buffer_load_dwordx4 v25, s[16:19], s32 offen offset:{j*1024} sc1 lds")
            a("s_add_u32 m0, m0, 16384")
            a("s_add_u32 s32, s32, 16384")
    a.label("L_ptail")
    for n in range(LA-2, -1, -1):
        a(f"s_waitcnt vmcnt({n*8})")
        a("s_barrier")
    a("s_cmp_eq_u32 s10, 1")
    a("s_cbranch_scc0 L_pend")
    a("s_barrier")
    a.label("L_pend")
    stamp_end(a, opt, 1, 4, vt=100)
    if opt.get("trace"):
        a("s_cmp_lg_u32 s12, 4")
        a("s_cbranch_scc1 L_end")
        a("s_lshl_b32 s57, s2, 8")
        a(f"s_add_u32 s57, s57, {STAMP_OFF + 81920}")
        a("v_lshl_add_u32 v61, v0, 2, s57")
        a("buffer_store_dword v60, v61, s[52:55], 0 offen")
    a.label("L_end")
    a("s_endpgm")
    a.label("L_codeend")
    def rotl(L, r, off=0):
        n = len(L)
        if not ROT: return [L[(t+off) % n] for t in range(n)]
        out = []
        for t in range(n):
            p = (t - r) & 3
            if n % 4 == 0:
                i = (t + (3 if p == 0 else -1) + off) % n
            else:
                t0 = t - p
                i = (t + (3 if p == 0 else -1)) if (t0 >= 0 and t0 + 3 < n) else t
            out.append(L[i])
        assert sorted(out) == sorted(L)
        return out
    a.raw(".type L_tab,@object")
    a.label("L_tab")
    C = list(range(32, 48))
    E = [C[:EX], C[16-EX:]]
    cover = {}
    for role in range(2):
        for side in range(2):
            for r in range(4):
                seq = rotl(list(range(8*side, 8*side+8)), r, 4*role) + rotl(list(range(16+8*side, 24+8*side)), r, 4*role) + rotl(list(range(48+4*side, 52+4*side)), r)
                if role == 0:
                    rest = [c for c in C if c not in E[1-side]]
                    if side == 1: rest = rest[::-1]
                    seq += rotl(rest, r)
                else:
                    seq += E[side]
                assert len(seq) == (KF if role == 0 else KH)
                cover[(role, side)] = set(seq)
                row = [0]*64
                for k, st_ in enumerate(seq): row[(32+k) & 63] = st_
                a.raw(".byte " + ",".join(map(str, row)))
    for side in range(2):
        assert cover[(0, side)] | cover[(1, 1-side)] == set(range(56)) and not (cover[(0, side)] & cover[(1, 1-side)])
    a.raw(".size L_tab, 1024")

def build(opt):
    a = Asm()
    a.raw(HDR.rstrip())
    a.raw(f"; @launch grid=(256,1,1) block=(512,1,1) lds={LDS}")
    a.raw('.amdgcn_target "amdgcn-amd-amdhsa--gfx950"')
    a.raw(".text")
    fused(a, opt)
    a.raw('.section .rodata,"a"')
    a.raw(".p2align 6")
    kd(a, KNAME, 256, 102)
    return a.text()

if __name__ == "__main__":
    opt = {}
    out = sys.argv[1]
    for kv in sys.argv[2:]:
        k, v = kv.split("=", 1)
        opt[k] = v.replace("+", " ")
    open(out, "w").write(build(opt))
```

```python
import sys
from gen import Asm, vr, srd, interleave, HDR, X_BYTES, W_BYTES, O_BYTES, kd, STAMP_OFF
from gen2 import stamp_start, mark, stamp_end

KNAME = "standalone__dense_activation_relu__prompt_kernel"
SLOT = 32768
R = 5
LDS = R * SLOT
S1 = 49152
HDATA = 917504
HS = 921600
PBASE = 16 * HS
PS = 65536
WS_BYTES = PBASE + 128 * PS
BIAS = 0x100
def sl(i): return ((i + 3) % R) * SLOT

def spread(m, o, two=0, start=0):
    out = []; oi = 0
    for i, x in enumerate(m):
        out.append(x)
        if i < start: continue
        for _ in range(2 if i - start < two else 1):
            if oi < len(o): out.append(o[oi]); oi += 1
    out.extend(o[oi:])
    return out

def fused(a, opt):
    SPF = int(opt.get("spf", 1))
    SPF0 = int(opt.get("spf0", 2))
    ROT = int(opt.get("rot", 1))
    ROT1 = int(opt.get("rot1", 1))
    EXF = int(opt.get("exf", 4))
    EXH = int(opt.get("exh", 0))
    EX = EXF + EXH
    KF, KH = 28 + EX, 28 - EX
    assert EX % 2 == 0
    LA = int(opt.get("la", 4))
    WU = 8*(LA-2)
    FA = int(opt.get("fa", 2))
    TWO = int(opt.get("two", 8))
    CPER = int(opt.get("cper", 3))
    sf = opt.get("sf", "sc1")
    lf1 = opt.get("lf1", "sc1")
    NOR = opt.get("nords"); NOM = opt.get("nomfma"); NOL = opt.get("noload")
    a.raw(f".globl {KNAME}")
    a.raw(".p2align 8")
    a.raw(f".type {KNAME},@function")
    a.label(KNAME)
    a("s_cmp_ge_u32 s2, 256")
    a("s_cbranch_scc1 L_end")
    stamp_start(a, opt)
    a("s_load_dwordx8 s[80:87], s[0:1], 0")
    a("s_load_dwordx4 s[4:7], s[0:1], 32")
    a("v_lshrrev_b32 v1, 6, v0")
    a("v_and_b32 v0, 63, v0")
    a("s_and_b32 s10, s2, 7")
    a("v_readfirstlane_b32 s12, v1")
    a("s_lshr_b32 s11, s2, 3")
    a("s_and_b32 s13, s10, 3")
    a("s_lshl_b32 s13, s13, 2")
    a("s_and_b32 s14, s11, 3")
    a("s_add_u32 s13, s13, s14")
    a("s_lshr_b32 s41, s10, 2")
    a("s_lshr_b32 s10, s11, 4")
    a("s_xor_b32 s14, s41, s10")
    a("s_lshl_b32 s14, s14, 2")
    a("s_lshr_b32 s11, s11, 2")
    a("s_and_b32 s11, s11, 3")
    a("s_add_u32 s11, s11, s14")
    a(f"s_mul_i32 s15, s13, {HS}")
    a(f"s_add_u32 s48, s15, {HDATA}")
    a("s_lshl_b32 s49, s13, 4")
    a("s_cmp_ge_u32 s12, 4")
    a("s_cbranch_scc1 L_prod")
    FR = [128, 176]
    XA = 224; WA = 226
    ACC = 0
    BUF = [64, 128]
    A1 = 234; AW = 236
    VL = 240; AHP = 241; VOUT = 242; VA = 243; V1 = 244
    T = 245
    VG = 253
    PK = 192
    a(f"v_mov_b32 v{VL}, v0")
    a("s_and_b32 s28, s12, 1")
    a("s_lshr_b32 s29, s12, 1")
    a(f"v_and_b32 v{T}, 15, v{VL}")
    a(f"v_lshrrev_b32 v{T+1}, 4, v{VL}")
    a(f"v_lshrrev_b32 v{T+2}, 1, v{T}")
    a(f"v_xor_b32 v{T+2}, v{T+1}, v{T+2}")
    a(f"v_lshlrev_b32 v{T+2}, 4, v{T+2}")
    a(f"v_lshl_add_u32 v{T+2}, v{T}, 7, v{T+2}")
    a("s_lshl_b32 s30, s28, 13")
    a(f"s_add_u32 s31, s30, {S1}")
    a(f"v_add_u32 v{XA}, s31, v{T+2}")
    a(f"v_xor_b32 v{XA+1}, 64, v{XA}")
    a(f"v_lshl_add_u32 v{VG}, v{VL}, 4, s30")
    a(f"v_add_u32 v{VG+1}, 4096, v{VG}")
    a(f"v_add_u32 v{A1}, {sl(0)}, v{VG}")
    a(f"v_add_u32 v{A1+1}, 1024, v{A1}")
    a("s_lshl_b32 s30, s12, 13")
    a(f"v_lshl_add_u32 v{AHP}, v{VL}, 4, s30")
    a(f"v_lshrrev_b32 v{T+2}, 2, v{VL}")
    a(f"v_and_b32 v{T+2}, 3, v{T+2}")
    a(f"v_lshl_add_u32 v{T+3}, v{T+1}, 3, v{T+2}")
    a(f"v_and_b32 v{T+4}, 3, v{VL}")
    a(f"v_lshlrev_b32 v{T+4}, 3, v{T+4}")
    a(f"v_add_u32 v{T+4}, {16384+S1}, v{T+4}")
    a(f"v_and_b32 v{T+5}, 1, v{T+1}")
    a(f"v_lshl_or_b32 v{T+6}, v{T+5}, 2, v{T+2}")
    a("s_lshl_b32 s30, s29, 2")
    a(f"v_xor_b32 v{T+7}, s30, v{T+6}")
    a(f"v_lshl_add_u32 v{AW}, v{T+3}, 8, v{T+4}")
    a(f"v_lshl_add_u32 v{AW}, v{T+7}, 5, v{AW}")
    a(f"v_add_u32 v{AW}, {sl(0)-S1}, v{AW}")
    for t in range(1, 4):
        a(f"v_xor_b32 v{AW+t}, {t*32}, v{AW}")
    a("s_lshl_b32 s30, s13, 7")
    a("s_lshl_b32 s31, s28, 6")
    a("s_add_u32 s30, s30, s31")
    a(f"v_add_u32 v{T}, s30, v{T}")
    a(f"v_lshlrev_b32 v{T}, 11, v{T}")
    a(f"v_lshl_add_u32 v{T}, v{T+5}, 5, v{T}")
    a(f"v_lshrrev_b32 v{T+7}, 1, v{T+1}")
    a(f"v_lshl_add_u32 v{T}, v{T+7}, 4, v{T}")
    a("s_lshl_b32 s30, s11, 8")
    a("s_lshl_b32 s31, s29, 7")
    a("s_add_u32 s30, s30, s31")
    a(f"v_add_u32 v{VOUT}, s30, v{T}")
    a(f"v_mov_b32 v{V1}, 1")
    a(f"s_mov_b32 s32, {S1}")
    a(f"s_mov_b32 s33, {-2*S1 & 0xffffffff}")
    a("s_mov_b32 s34, 1")
    a("s_mov_b32 s35, 15")
    a("s_waitcnt lgkmcnt(0)")
    a("s_mov_b32 s8, s6")
    a("s_mov_b32 s9, s7")
    srd(a, 24, 6, 7, WS_BYTES)
    srd(a, 20, 86, 87, O_BYTES)
    for i in range(96):
        a(f"v_mov_b32 v{i}, 0")
    a("s_or_b32 s30, s10, s11")
    a("s_or_b32 s30, s30, s12")
    a("s_cmp_eq_u32 s30, 0")
    a("s_cbranch_scc0 L_noinit")
    a("s_mov_b32 s50, 1")
    for q in range(12):
        a(f"s_movk_i32 s{88+q}, {BIAS}")
        a(f"s_atomic_swap s{88+q}, s[6:7], s48 offset:{q*128} glc")
    a("s_waitcnt lgkmcnt(0)")
    a("s_atomic_add s50, s[4:5], s49")
    a.label("L_noinit")
    def adv(regs, ring):
        return ["s_add_u32 s34, s34, 1", f"s_cmp_eq_u32 s34, {ring}", "s_cselect_b32 s36, s33, s32",
                "s_cselect_b32 s34, 0, s34"] + [f"v_add_u32 v{r}, s36, v{r}" for r in regs]
    def endstage(bar=True):
        a("s_waitcnt lgkmcnt(0)")
        if bar: a("s_barrier")
    a("s_cmp_eq_u32 s10, 1")
    a("s_cbranch_scc1 L_g1H")
    def g1(NT, tag):
        P = 64*NT
        NP = NT//2
        if NT == 8:
            a("s_lshl_b32 s30, s29, 8")
            a(f"v_lshl_add_u32 v{WA}, v{T+3}, 9, v{T+4}")
            a(f"v_lshl_add_u32 v{WA}, v{T+6}, 5, v{WA}")
            a(f"v_add_u32 v{WA}, s30, v{WA}")
            for t in range(1, 8):
                a(f"v_xor_b32 v{WA+t}, {t*32}, v{WA}")
            for i in range(96, 128):
                a(f"v_mov_b32 v{i}, 0")
            a(f"s_mul_i32 s30, s13, {8*PS}")
            a(f"s_mul_i32 s31, s11, {PS}")
            a("s_add_u32 s30, s30, s31")
            a(f"s_add_u32 s30, s30, {PBASE}")
            a(f"v_add_u32 v{VOUT}, s30, v{AHP}")
            a("s_lshl_b32 s37, s11, 16")
            a(f"s_add_u32 s37, s37, {24*16384}")
        else:
            a(f"v_lshrrev_b32 v{T+7}, 1, v{T+2}")
            a(f"v_lshl_or_b32 v{T+7}, v{T+5}, 1, v{T+7}")
            a(f"v_mul_u32_u24 v{T}, 384, v{T+3}")
            a(f"v_add_u32 v{T}, v{T}, v{T+4}")
            a("s_mul_i32 s30, s29, 6")
            for t in range(6):
                a(f"v_xor_b32 v{WA+t}, s30, v{T+7}")
                a(f"v_lshl_add_u32 v{WA+t}, v{WA+t}, 5, v{T}")
                a("s_add_u32 s30, s30, 1")
            a("s_mul_i32 s37, s11, %d" % (3*16384))
        a("s_lshl_b32 s30, s41, 7")
        a("s_add_u32 s30, s30, s48")
        if NT == 8: a("s_add_u32 s30, s30, 256")
        a(f"v_mov_b32 v{VA}, s30")
        a(f"s_mov_b32 s41, {int(opt.get('ad'+tag, 0))}")
        a("s_add_u32 s37, s37, s15")
        a("s_cmp_eq_u32 s29, 0")
        for pp in range(NP):
            p0, p1 = pp, NP + pp
            a(f"s_mov_b32 s30, {sl(p1>>1) + (p1&1)*1024}")
            a(f"s_cselect_b32 s30, {sl(p0>>1) + (p0&1)*1024}, s30")
            a(f"v_add_u32 v{T+pp}, s30, v{VG}")
            a(f"s_mov_b32 s{44+pp}, {(p1>>1)*16384 + (p1&1)*1024}")
            a(f"s_cselect_b32 s{44+pp}, {(p0>>1)*16384 + (p0&1)*1024}, s{44+pp}")
        for pp in range(NP):
            a(f"s_add_u32 s{44+pp}, s{44+pp}, s37")
        def reads(kk):
            fb = FR[kk]; r = []
            if NOR: return r
            r.append(f"ds_read_b128 {vr(fb,4)}, v{XA+kk} offset:0")
            for t in range(NT):
                for hh in range(2):
                    r.append(f"ds_read_b64_tr_b16 {vr(fb+16+4*t+2*hh,2)}, v{WA+t} offset:{(32*kk+4*hh)*P}")
            for mi in range(1, 4):
                r.append(f"ds_read_b128 {vr(fb+4*mi,4)}, v{XA+kk} offset:{mi*2048}")
            return r
        def mm1(kk, mi, t):
            if NOM: return "s_nop 0"
            fb = FR[kk]; acc = 4*(mi*NT + t)
            return f"v_mfma_f32_16x16x32_bf16 {vr(acc,4)}, {vr(fb+16+4*t,4)}, {vr(fb+4*mi,4)}, {vr(acc,4)}"
        def mm(kk):
            return [mm1(kk, mi, t) for mi in range(4) for t in range(NT)]
        mark(a, opt, 0)
        a("s_barrier")
        mark(a, opt, 1)
        for s in reads(0): a(s)
        endstage(False)
        a.raw(".p2align 6")
        a.label(f"L1{tag}")
        o = reads(1) + adv([XA, XA+1] + list(range(WA, WA+NT)), 3) + ["s_sub_u32 s35, s35, 1", "s_cmp_eq_u32 s35, 0"]
        for s in spread(mm(0), o, two=TWO): a(s)
        endstage()
        for s in spread(mm(1), reads(0), two=int(opt.get("two1", 0))): a(s)
        endstage(False)
        a(f"s_cbranch_scc0 L1{tag}")
        mark(a, opt, 2)
        for s in spread([mm1(0, mi, t) for mi in range(FA) for t in range(NT)], reads(1), two=12): a(s)
        endstage(False)
        seq = [(1, mi, t) for mi in range(FA) for t in range(NT)]
        for mi in range(FA, 4):
            seq += [(0, mi, t) for t in range(NT)] + [(1, mi, t) for t in range(NT)]
        def unit(mi, pp):
            acc = 8*(mi*NP + pp); cv = []
            for e in range(8):
                cv.append(f"v_maximum3_f32 v{acc+e}, v{acc+e}, 0, 0")
            for e in range(4):
                cv.append(f"v_cvt_pk_bf16_f32 v{acc+e}, v{acc+2*e}, v{acc+2*e+1}")
            if not opt.get("nostore"):
                cv.append(f"buffer_store_dwordx4 {vr(acc,4)}, v{VG+(mi>>1)}, s[24:27], s{44+pp} offen offset:{(mi&1)*2048} {sf}")
            cv.append(f"ds_write_b128 v{T+pp}, {vr(acc,4)} offset:{mi*2048}")
            return cv
        out = []; ready = {}; pend = [(mi, pp) for mi in range(4) for pp in range(NP)]; cur = []
        def pull():
            if not cur and pend and pend[0] in ready and len(out) - ready[pend[0]] >= 9:
                cur.extend(unit(*pend.pop(0)))
            if cur: out.append(cur.pop(0)); return True
            return False
        for (kk, mi, t) in seq:
            out.append(mm1(kk, mi, t))
            if kk == 1 and (t & 1): ready[(mi, t >> 1)] = len(out)
            for _ in range(CPER):
                if not pull(): break
        while cur or pend:
            if not pull(): out.append("s_nop 0")
        for s in out: a(s)
        a(f"s_mov_b32 s35, {(KH if NT == 8 else KF)//2}")
    g1(6, "F")
    a("s_branch L_g2")
    a.label("L_g1H")
    g1(8, "H")
    a.label("L_g2")
    a(f"s_mov_b32 s32, {SLOT}")
    a(f"s_mov_b32 s33, {-(R-1)*SLOT & 0xffffffff}")
    a("s_mov_b32 s34, 3")
    endstage()
    mark(a, opt, 3)
    def rdU(b):
        r = []
        for kk in range(2):
            fb = BUF[b] + 32*kk
            if NOR: continue
            r.append(f"ds_read_b128 {vr(fb,4)}, v{A1+kk} offset:0")
            for t in range(4):
                for hh in range(2):
                    r.append(f"ds_read_b64_tr_b16 {vr(fb+16+4*t+2*hh,2)}, v{AW+t} offset:{(32*kk+4*hh)*256}")
            for mi in range(1, 4):
                r.append(f"ds_read_b128 {vr(fb+4*mi,4)}, v{A1+kk} offset:{mi*2048}")
        return r + adv(range(A1, A1+6), R)
    def mmU(b):
        m = []
        if NOM: return ["s_nop 0"]*32
        for kk in range(2):
            fb = BUF[b] + 32*kk
            for mi in range(4):
                for t in range(4):
                    acc = ACC + 4*(mi*4+t)
                    m.append(f"v_mfma_f32_16x16x32_bf16 {vr(acc,4)}, {vr(fb+16+4*t,4)}, {vr(fb+4*mi,4)}, {vr(acc,4)}")
        return m
    for s in rdU(0): a(s)
    for i in range(64):
        a(f"v_mov_b32 v{ACC+i}, 0")
    endstage()
    a("s_branch LU_mid")
    a.raw(".p2align 6")
    a.label("LU_loop")
    TU = int(opt.get("twou", 0))
    for s in spread(mmU(1), rdU(0), two=TU): a(s)
    endstage()
    a.label("LU_mid")
    for s in spread(mmU(0), rdU(1), two=TU): a(s)
    a("s_sub_u32 s41, s41, 1")
    a("s_cbranch_scc0 L_nwU")
    a("s_waitcnt vmcnt(0)")
    a("s_mov_b64 exec, 1")
    a(f"buffer_atomic_add v{V1}, v{VA}, s[24:27], 0 offen sc1")
    a("s_mov_b64 exec, -1")
    mark(a, opt, 6)
    a.label("L_nwU")
    a("s_sub_u32 s35, s35, 1")
    a("s_cmp_eq_u32 s35, 0")
    endstage()
    a("s_cbranch_scc0 LU_loop")
    mmt = mmU(1)
    mmt = [mmt[k] for t in range(16) for k in (t, 16+t)]
    a("s_cmp_eq_u32 s10, 0")
    a("s_cbranch_scc1 L_finF")
    a("s_movk_i32 s38, 4096")
    a("s_mov_b32 s39, 32768")
    a(f"s_mov_b32 s41, {32768+4096}")
    st = []
    for q in range(16):
        so = ["0", "s38", "s39", "s41"][q >> 2]
        st.append(f"buffer_store_dwordx4 {vr(ACC+4*q,4)}, v{VOUT}, s[24:27], {so} offen offset:{(q&3)*1024} {sf}")
    a("s_lshl_b32 s30, s11, 7")
    a("s_add_u32 s30, s30, s48")
    a("s_add_u32 s30, s30, 512")
    a(f"v_mov_b32 v{VA}, s30")
    for k, x in enumerate(mmt):
        a(x)
        if k >= 11 and (k & 1): a(st.pop(0))
    mark(a, opt, 4)
    a("s_nop 7")
    PH = int(opt.get("ph", 2))
    while len(st) > PH: a(st.pop(0))
    a(f"s_waitcnt vmcnt({8-PH})")
    a("s_mov_b64 exec, 1")
    a(f"buffer_atomic_add v{V1}, v{VA}, s[24:27], 0 offen sc1")
    a("s_mov_b64 exec, -1")
    for x in st: a(x)
    a(f"v_mov_b32 v{V1}, 16")
    a("s_waitcnt vmcnt(0)")
    a("s_mov_b64 exec, 1")
    a(f"buffer_atomic_add v{V1}, v{VA}, s[24:27], 0 offen sc1")
    a("s_mov_b64 exec, -1")
    mark(a, opt, 5)
    a.label("L_finH")
    stamp_end(a, opt, 0, 0, vt=64)
    a("s_endpgm")
    a.label("L_finF")
    a(f"v_add_u32 v{T}, {sl(KF)}, v{AHP}")
    a(f"v_add_u32 v{T+1}, {sl(KF+1)}, v{AHP}")
    a("s_mov_b32 s32, 32768")
    a("s_mov_b32 s33, 65536")
    a("s_mov_b32 s34, 98304")
    of = opt.get("of", "")
    def fin(u):
        mi, p = u >> 1, u & 1
        acc = ACC + 8*u; pk = PK + 4*u; r = []
        for e in range(8):
            r.append(f"v_add_f32 v{acc+e}, v{acc+e}, v{BUF[0]+8*u+e}")
        for e in range(4):
            r.append(f"v_cvt_pk_bf16_f32 v{pk+e}, v{acc+2*e}, v{acc+2*e+1}")
        r.append("s_nop 1")
        r.append(f"v_permlane16_swap_b32 v{pk}, v{pk+2}")
        r.append(f"v_permlane16_swap_b32 v{pk+1}, v{pk+3}")
        so = ["0", "s32", "s33", "s34"][mi]
        r.append(f"buffer_store_dwordx4 {vr(pk,4)}, v{VOUT}, s[20:23], {so} offen offset:{p*64} {of}")
        return r
    p0 = [f"ds_read_b128 {vr(BUF[0]+4*q,4)}, v{T} offset:{q*1024}" for q in range(8)]
    p1 = [f"ds_read_b128 {vr(BUF[0]+32+4*q,4)}, v{T+1} offset:{q*1024}" for q in range(8)]
    for x in mmt[:16]: a(x)
    mark(a, opt, 4)
    a("s_barrier")
    for x in interleave(mmt[16:], p0): a(x)
    a("s_waitcnt lgkmcnt(0)")
    for x in fin(0)+fin(1)+fin(2): a(x)
    mark(a, opt, 7)
    a("s_barrier")
    for x in p1: a(x)
    for x in fin(3): a(x)
    a("s_waitcnt lgkmcnt(0)")
    for u in range(4, 8):
        for x in fin(u): a(x)
    mark(a, opt, 5)
    a("s_branch L_finH")
    a.label("L_prod")
    a("s_sub_u32 s3, s12, 4")
    a("s_add_u32 s40, s13, s11")
    a("s_and_b32 s40, s40, 3")
    a("s_getpc_b64 s[42:43]")
    a.label("L_pc2")
    a("s_lshl_b32 s29, s10, 3")
    a("s_add_u32 s29, s29, s11")
    a("s_lshl_b32 s29, s29, 2")
    a("s_add_u32 s29, s29, s40")
    a("s_lshl_b32 s29, s29, 6")
    a("s_add_u32 s29, s29, L_tab-L_pc2")
    a("v_add_u32 v6, s29, v0")
    a("global_load_ubyte v46, v6, s[42:43]")
    a("v_lshrrev_b32 v1, 3, v0")
    a("v_and_b32 v2, 7, v0")
    a("v_lshrrev_b32 v3, 4, v0")
    a("v_xor_b32 v2, v2, v3")
    a("s_lshl_b32 s28, s13, 7")
    a("s_lshl_b32 s29, s3, 5")
    a("s_add_u32 s28, s28, s29")
    a("v_add_u32 v1, s28, v1")
    a("v_lshlrev_b32 v1, 11, v1")
    a("v_lshl_add_u32 v8, v2, 4, v1")
    a("v_xor_b32 v9, 64, v8")
    a(f"v_add_u32 v9, {16384-1024}, v9")
    a(f"v_add_u32 v10, {32768-2048}, v8")
    a(f"v_add_u32 v11, {32768-2048}, v9")
    a("s_lshl_b32 s30, s3, 12")
    a("v_subrev_u32 v5, s40, v0")
    a("v_and_b32 v5, 3, v5")
    a("v_cmp_eq_u32 vcc, 0, v5")
    a(f"v_mov_b32 v5, {-1 if ROT1 else 0}")
    a("v_add_u32 v7, 1, v0")
    a(f"v_cndmask_b32 v5, v5, {3 if ROT1 else 0}, vcc")
    a("v_mul_u32_u24 v42, 21846, v7")
    a("v_add_u32 v5, v5, v0")
    a(f"v_and_b32 v5, {3 if opt.get('small') else 15}, v5")
    a("v_lshlrev_b32 v40, 7, v5")
    a(f"v_mul_u32_u24 v41, {64*7168//1024}, v5")
    a("v_lshlrev_b32 v41, 10, v41")
    a("v_lshrrev_b32 v42, 16, v42")
    a("v_mul_u32_u24 v42, 3, v42")
    a("v_sub_u32 v42, v7, v42")
    a("v_mul_u32_u24 v42, 48, v42")
    a("v_lshl_add_u32 v42, v42, 10, s30")
    a("s_mul_i32 s28, s3, %d" % (16*7168))
    a("s_movk_i32 s29, 7168")
    a("s_mov_b32 s35, 0")
    a("v_readlane_b32 s32, v40, 0")
    a("v_readlane_b32 s33, v41, 0")
    a(f"s_add_u32 m0, s30, {S1}")
    a("s_lshl_b32 s38, s2, 2")
    a("s_add_u32 s38, s38, s3")
    a("s_lshl_b32 s38, s38, 9")
    if SPF0: a(f"s_sub_u32 s38, s38, {SPF0*524288}")
    a("s_mov_b32 s93, 1")
    a("s_mov_b32 s51, 0")
    a("s_mov_b32 s98, 0")
    a("s_cmp_eq_u32 s10, 1")
    a("s_cbranch_scc1 L_p1H")
    def trace():
        if opt.get("trace"):
            a("s_sub_u32 s76, s78, s62")
            a("v_cmp_eq_u32 vcc, s77, v0")
            a("v_mov_b32 v62, s76")
            a("s_add_u32 s77, s77, 1")
            a("v_cndmask_b32 v60, v60, v62, vcc")
            a("s_memtime s[78:79]")
    def tmo(lab):
        if opt.get("tmo"):
            a("s_add_u32 s98, s98, 1")
            a("s_cmp_gt_u32 s98, 20000")
            a(f"s_cbranch_scc1 {lab}")
    def ldW(i):
        a(f"s_add_u32 m0, s30, {sl(i)+16384}")
        a("s_nop 0")
        for b in range(4):
            if not NOL: a(f"buffer_load_dwordx4 v{12+b}, s[20:23], s{80+i} offen offset:{b*1024} lds")
    def ldH(i, sreg):
        a(f"s_add_u32 m0, s30, {sl(i)}")
        a("s_nop 0")
        for b in range(4):
            if not NOL: a(f"buffer_load_dwordx4 v8, s[16:19], s{sreg} offen offset:{b*1024} {lf1} lds")
    def gate(tag):
        a("s_cmp_eq_u32 s3, 0")
        a(f"s_cbranch_scc0 L_gok{tag}")
        a.label(f"L_g{tag}")
        a("s_waitcnt lgkmcnt(0)")
        a("s_cmp_eq_u32 s50, s53")
        a(f"s_cbranch_scc1 L_gok{tag}")
        tmo(f"L_gok{tag}")
        a("s_mov_b32 s50, 0")
        a("s_atomic_add s50, s[6:7], s52 glc")
        a(f"s_branch L_g{tag}")
        a.label(f"L_gok{tag}")
    def p1(NT, tag):
        NP = NT//2
        if NT == 8:
            a("v_lshrrev_b32 v1, 5, v0")
            a("v_and_b32 v2, 31, v0")
            a("v_lshlrev_b32 v4, 1, v1")
            a("v_xor_b32 v2, v2, v4")
            a("v_mul_u32_u24 v1, s29, v1")
            a("v_lshl_add_u32 v1, v2, 4, v1")
            a("s_lshl_b32 s31, s11, 9")
            a("s_add_u32 s31, s31, s28")
            a("s_add_u32 s31, s31, 3072")
            a("v_add_u32 v12, s31, v1")
            for b in range(1, 8):
                x = ((b & 1) << 6) | ((b >> 2) << 7)
                a(f"v_xor_b32 v{12+b}, {x}, v12")
                a(f"v_add_u32 v{12+b}, {2*b*7168 - (b & 3)*1024}, v{12+b}")
        else:
            a("s_mul_i32 s31, s11, 384")
            a("s_add_u32 s31, s31, s28")
            for b in range(3):
                a(f"v_add_u32 v1, {64*b}, v0")
                a("v_mul_u32_u24 v2, 2731, v1")
                a("v_lshrrev_b32 v2, 16, v2")
                a("v_mul_u32_u24 v4, 24, v2")
                a("v_sub_u32 v4, v1, v4")
                a("v_and_b32 v5, 2, v2")
                a("v_xor_b32 v4, v4, v5")
                a("v_mul_u32_u24 v2, s29, v2")
                a(f"v_add_u32 v2, s31, v2")
                a(f"v_lshl_add_u32 v{12+b}, v4, 4, v2")
                a("v_xor_b32 v4, 4, v4")
                a(f"v_lshl_add_u32 v{15+b}, v4, 4, v2")
                if b: a(f"v_subrev_u32 v{12+b}, {b*1024}, v{12+b}")
                a(f"v_add_u32 v{15+b}, {8*7168 - ((b+3) & 3)*1024}, v{15+b}")
        a(f"s_mul_i32 s31, s3, {NT*1024-4096}")
        a("s_add_u32 s31, s31, 16384")
        a("s_waitcnt lgkmcnt(0)")
        a("s_mov_b32 s8, s6")
        a("s_mov_b32 s9, s7")
        srd(a, 16, 80, 81, X_BYTES)
        srd(a, 20, 82, 83, W_BYTES)
        srd(a, 44, 84, 85, W_BYTES if SPF else 0)
        srd(a, 24, 6, 7, WS_BYTES)
        a(f"s_branch LQn{tag}")
        a.raw(".p2align 6")
        a.label(f"LQ{tag}")
        a(f"s_waitcnt vmcnt({4+NT})")
        a("s_barrier")
        a.label(f"LQn{tag}")
        trace()
        for j in range(4):
            if not NOL: a(f"buffer_load_dwordx4 v{8+j}, s[16:19], s32 offen offset:{j*1024} lds")
            if j == 0: a("s_add_u32 s35, s35, 1")
            if j == 1: a("v_readlane_b32 s94, v40, s35")
            if j == 2: a("v_readlane_b32 s95, v41, s35")
            a(f"s_buffer_load_dword s99, s[44:47], s38 offset:{j*128}")
            a(f"s_buffer_load_dword s99, s[44:47], s38 offset:{j*128+64}")
        a("s_add_u32 m0, m0, s31")
        a("v_readlane_b32 s96, v42, s35")
        for b in range(NT):
            if b == 4:
                a("s_add_u32 m0, m0, 4096")
                a("s_add_u32 s38, s38, 524288")
            if b == NT-1: a("s_cmp_lt_u32 s35, 2")
            if not NOL: a(f"buffer_load_dwordx4 v{12+b}, s[20:23], s33 offen offset:{(b&3)*1024} lds")
        a("s_mov_b64 s[32:33], s[94:95]")
        a("s_mov_b32 m0, s96")
        a(f"s_cbranch_scc1 LQn{tag}")
        a("s_cmp_eq_u32 s35, 8")
        a(f"s_cbranch_scc1 L_ev{tag}")
        a.label(f"L_evr{tag}")
        a("s_cmp_lt_u32 s35, 16")
        a(f"s_cbranch_scc1 LQ{tag}")
        mark(a, opt, 0)
        a("s_add_u32 s29, s15, s30")
        a(f"v_lshl_add_u32 v8, v0, 4, s29")
        a("v_and_b32 v1, 15, v0")
        a("v_lshlrev_b32 v2, 1, v3")
        a("v_xor_b32 v4, v1, v2")
        a("v_lshlrev_b32 v1, 11, v3")
        a("v_lshl_add_u32 v1, v4, 4, v1")
        a("s_lshr_b32 s28, s3, 1")
        a("s_lshl_b32 s28, s28, 16")
        a("s_and_b32 s29, s3, 1")
        a("s_lshl_b32 s29, s29, 14")
        a("s_add_u32 s28, s28, s29")
        a("s_lshl_b32 s29, s11, 8")
        a("s_add_u32 s28, s28, s29")
        a("v_add_u32 v12, s28, v1")
        a(f"v_add_u32 v13, {16*2048-1024}, v12")
        a("v_xor_b32 v14, 128, v12")
        a(f"v_add_u32 v14, {4*2048-2048}, v14")
        a(f"v_add_u32 v15, {16*2048-1024}, v14")
        if opt.get("small"): a("v_and_b32 v46, 3, v46")
        a("v_lshlrev_b32 v40, 14, v46")
        a("v_lshlrev_b32 v41, 17, v46")
        a("v_add_u32 v7, 3, v0")
        a("v_mul_u32_u24 v42, 13108, v7")
        a("v_lshrrev_b32 v42, 16, v42")
        a("v_mul_u32_u24 v42, 5, v42")
        a("v_sub_u32 v42, v7, v42")
        a("v_lshl_add_u32 v42, v42, 15, s30")
        a("s_mov_b64 s[16:17], s[24:25]")
        a("s_mov_b32 s18, s26")
        a("s_mov_b64 s[20:21], s[44:45]")
        NW = LA + 2
        for e in range(NW):
            a(f"v_readlane_b32 s{80+e}, v41, {e}")
        for e in range(NP, NW):
            a(f"v_readlane_b32 s{88+e-3}, v40, {e}")
        a(f"v_readlane_b32 s32, v40, {NW}")
        a(f"v_readlane_b32 s33, v41, {NW}")
        a("s_lshl_b32 s52, s41, 7")
        a("s_add_u32 s52, s52, s48")
        a(f"s_movk_i32 s53, {BIAS+16}")
        a("s_mov_b32 s50, 1")
        a(f"s_waitcnt vmcnt({4+NT})")
        a("s_barrier")
        ldW(0); ldW(1)
        a(f"s_waitcnt vmcnt({0 if NOL else 8})")
        a("s_barrier")
        ldW(2)
        a("s_cmp_eq_u32 s3, 0")
        a(f"s_cbranch_scc0 L_iok{tag}")
        a.label(f"L_ic{tag}")
        a("s_cmp_eq_u32 s51, 1")
        a(f"s_cbranch_scc1 L_iok{tag}")
        a("s_waitcnt lgkmcnt(0)")
        a("s_cmp_eq_u32 s51, 1")
        a(f"s_cbranch_scc1 L_iok{tag}")
        tmo(f"L_iok{tag}")
        a("s_mov_b32 s51, 0")
        a("s_atomic_add s51, s[4:5], s49 glc")
        a(f"s_branch L_ic{tag}")
        a.label(f"L_iok{tag}")
        a("s_waitcnt vmcnt(0)")
        a("s_barrier")
        mark(a, opt, 1)
        if NT == 8:
            a("s_cmp_eq_u32 s3, 0")
            a("s_cbranch_scc0 L_npa")
            a("s_mov_b32 s50, 0")
            a("s_atomic_add s50, s[6:7], s52 glc")
            a.label("L_npa")
        ldW(3); ldW(4)
        a("s_barrier")
        if LA == 4: ldW(5)
        mark(a, opt, 2)
        gate(tag)
        mark(a, opt, 3)
        a("s_barrier")
        for e in range(NP, NW): ldH(e, 88+e-3)
        q = []
        if NT == 6:
            if EXF: q.append(("x", 0, 11))
            q.append(("s", 256, 11+EXF))
            if EXH: q.append(("x", 256, 27+EXF))
        else:
            q.append(("s", 256, 15-EXF))
        a("s_xor_b32 s58, s52, 128")
        a("s_mov_b32 s59, s52")
        for k, b in enumerate((52, 80, 84)):
            if k < len(q):
                a(f"s_add_u32 s{b}, s{58 if q[k][0] == 'x' else 59}, {q[k][1]}")
                a(f"s_movk_i32 s{b+1}, {BIAS+16}")
                a(f"s_mov_b32 s{b+2}, {max(NW+1, q[k][2]-int(opt.get('pw', 5)))}")
                a(f"s_mov_b32 s{b+3}, {q[k][2]}")
            else:
                a(f"s_mov_b64 s[{b}:{b+1}], -1")
                a(f"s_mov_b64 s[{b+2}:{b+3}], -1")
        a(f"s_mov_b32 s42, {KF if NT == 6 else KH}")
    p1(6, "F")
    a("s_branch L_p2")
    for tag in "FH":
        a.label(f"L_ev{tag}")
        a("s_cmp_eq_u32 s3, 0")
        a(f"s_cbranch_scc0 L_evr{tag}")
        a("s_atomic_add s51, s[4:5], s49 glc")
        a(f"s_branch L_evr{tag}")
    a.label("L_p1H")
    p1(8, "H")
    a.label("L_p2")
    a("s_mov_b32 s50, 1")
    a("s_cmp_eq_u32 s3, 0")
    a("s_cselect_b32 s54, s54, -1")
    a(f"s_mov_b32 s56, {'0' if LA == 4 else 's42'}")
    a(f"s_mov_b32 s35, {LA+2}")
    a(f"s_add_u32 m0, s30, {sl(LA+2)}")
    a(f"s_waitcnt vmcnt({0 if NOL else 4*(LA-2)})")
    a("s_branch LP_bar")
    a.raw(".p2align 6")
    a.label("LP")
    a(f"s_waitcnt vmcnt({WU})")
    a.label("LP_bar")
    a("s_barrier")
    a.label("LP_nb")
    trace()
    def ld1(j):
        if not NOL: a(f"buffer_load_dwordx4 v8, s[16:19], s32 offen offset:{j*1024} {lf1} lds")
    def ld2(b):
        if not NOL: a(f"buffer_load_dwordx4 v{12+b}, s[20:23], s33 offen offset:{b*1024} lds")
    ld1(0)
    a("s_cmp_eq_u32 s35, s54")
    a("s_cbranch_scc1 L_pv")
    a.label("L_pvret")
    a("s_add_u32 s35, s35, 1")
    ld1(1)
    a("v_readlane_b32 s94, v40, s35")
    ld1(2)
    a("v_readlane_b32 s95, v41, s35")
    ld1(3)
    a("s_add_u32 m0, m0, 16384")
    a("v_readlane_b32 s96, v42, s35")
    for b in range(4):
        if b == 3: a("s_cmp_lt_u32 s35, s56")
        ld2(b)
    a("s_mov_b64 s[32:33], s[94:95]")
    a("s_mov_b32 m0, s96")
    a("s_cbranch_scc1 LP")
    a("s_cmp_eq_u32 s35, 7")
    a("s_cbranch_scc0 L_pdone")
    a("s_mov_b32 s56, s42")
    a("s_waitcnt vmcnt(12)")
    a("s_branch LP_bar")
    a.label("L_pv")
    a("s_cmp_eq_u32 s50, s53")
    a("s_cbranch_scc1 L_gok")
    a("s_cmp_eq_u32 s35, s55")
    a("s_cbranch_scc1 L_gate")
    a("s_add_u32 s54, s35, 1")
    a("s_cmp_eq_u32 s50, 0")
    a("s_cbranch_scc1 L_pvret")
    a("s_mov_b32 s50, 0")
    a("s_atomic_add s50, s[6:7], s52 glc")
    a("s_branch L_pvret")
    a.label("L_gate")
    a("s_waitcnt lgkmcnt(0)")
    a("s_cmp_eq_u32 s50, s53")
    a("s_cbranch_scc1 L_gok")
    tmo("L_gok")
    a("s_mov_b32 s50, 0")
    a("s_atomic_add s50, s[6:7], s52 glc")
    a("s_branch L_gate")
    a.label("L_gok")
    a("s_mov_b32 s50, 1")
    a("s_mov_b64 s[52:53], s[80:81]")
    a("s_mov_b64 s[54:55], s[82:83]")
    a("s_mov_b64 s[80:81], s[84:85]")
    a("s_mov_b64 s[82:83], s[86:87]")
    a("s_mov_b64 s[84:85], -1")
    a("s_mov_b64 s[86:87], -1")
    a("s_add_u32 s94, s35, 1")
    a("s_max_u32 s54, s54, s94")
    a("s_branch L_pvret")
    a.label("L_pdone")
    mark(a, opt, 4)
    a("s_cmp_eq_u32 s10, 1")
    a("s_cbranch_scc1 L_ptail")
    a(f"s_mul_i32 s28, s13, {8*PS}")
    a(f"s_mul_i32 s29, s11, {PS}")
    a("s_add_u32 s28, s28, s29")
    a("s_sub_u32 s32, s28, s15")
    a(f"s_add_u32 s32, s32, {PBASE}")
    a("s_lshl_b32 s52, s11, 7")
    a("s_add_u32 s52, s52, s48")
    a("s_add_u32 s52, s52, 512")
    a("s_mov_b32 s50, 0")
    a("s_atomic_add s50, s[6:7], s52 glc")
    a("s_mov_b32 s59, 0")
    a("s_mov_b32 s58, 0")
    a(f"s_mov_b32 s35, {4-LA}")
    a(f"s_waitcnt vmcnt({WU})")
    a("s_barrier")
    a("s_waitcnt vmcnt(0)")
    a.label("LT")
    for e in range(2):
        a(f"s_cmp_eq_u32 s59, {e}")
        a(f"s_cbranch_scc0 LT_n{e}")
        if e == 0:
            a("s_and_b32 s28, s50, 15")
            a("s_cmp_eq_u32 s28, 4")
        else:
            a(f"s_cmpk_eq_u32 s50, {BIAS+0x44}")
        a(f"s_cbranch_scc0 LT_poll")
        a(f"s_add_u32 m0, s30, {sl(KF+e)}")
        a("s_add_u32 s59, s59, 1")
        if e == 0: mark(a, opt, 5)
        for h in range(2):
            for j in range(4):
                if not NOL: a(f"buffer_load_dwordx4 v8, s[16:19], s32 offen offset:{j*1024} sc1 lds")
            a("s_add_u32 m0, m0, 16384")
            a("s_add_u32 s32, s32, 16384")
        a.label(f"LT_n{e}")
    a("s_branch LT_go")
    a.label("LT_poll")
    a("s_cmp_eq_u32 s50, 0")
    a("s_cbranch_scc1 LT_go")
    if opt.get("tmo"):
        a("s_add_u32 s98, s98, 1")
        a("s_cmp_gt_u32 s98, 20000")
        a(f"s_cselect_b32 s50, {BIAS+0x44}, s50")
        a("s_cbranch_scc1 LT")
    a("s_mov_b32 s50, 0")
    a("s_atomic_add s50, s[6:7], s52 glc")
    a.label("LT_go")
    a("s_cmp_lt_u32 s35, 3")
    a("s_cbranch_scc1 LT_bar")
    a("s_cmp_eq_u32 s59, 2")
    a("s_cbranch_scc1 LT_both")
    a("s_cmp_eq_u32 s35, 3")
    a("s_cselect_b32 s28, s58, 0")
    a("s_mov_b32 s58, s59")
    a("s_cmp_eq_u32 s28, 1")
    a("s_cbranch_scc1 LT_one")
    a("s_waitcnt lgkmcnt(0)")
    a("s_branch LT")
    a.label("LT_one")
    a("s_waitcnt vmcnt(0)")
    a.label("LT_bar")
    a("s_add_u32 s35, s35, 1")
    a("s_barrier")
    a("s_branch LT")
    a.label("LT_both")
    a("s_cmp_eq_u32 s35, 3")
    a("s_cbranch_scc0 LT_last")
    a("s_waitcnt vmcnt(8)")
    a("s_barrier")
    a.label("LT_last")
    a("s_waitcnt vmcnt(0)")
    a("s_barrier")
    a("s_branch L_pend")
    a.label("L_ptail")
    for n in range(LA-2, -1, -1):
        a(f"s_waitcnt vmcnt({n*8})")
        a("s_barrier")
    a("s_barrier")
    a.label("L_pend")
    stamp_end(a, opt, 1, 4, vt=100)
    if opt.get("trace"):
        a("s_cmp_lg_u32 s12, 4")
        a("s_cbranch_scc1 L_end")
        a("s_lshl_b32 s57, s2, 8")
        a(f"s_add_u32 s57, s57, {STAMP_OFF + 81920}")
        a("v_lshl_add_u32 v61, v0, 2, s57")
        a("buffer_store_dword v60, v61, s[52:55], 0 offen")
    a.label("L_end")
    a("s_endpgm")
    def rotl(L, r):
        n = len(L)
        if not ROT: return list(L)
        out = []
        for t in range(n):
            p = (t - r) & 3
            t0 = t - p
            i = (t + (3 if p == 0 else -1)) if (t0 >= 0 and t0 + 3 < n) else t
            out.append(L[i])
        assert sorted(out) == sorted(L)
        return out
    a.raw(".type L_tab,@object")
    a.label("L_tab")
    grp = lambda g: list(range(24+4*g, 28+4*g))
    seqs = {}
    for role in range(2):
        for n in range(8):
            side = (n >> 2) ^ role
            for r in range(4):
                fset = list(range(12*side, 12*side+12))
                rem = grp(n ^ 1) + grp(n ^ 2) + grp(n ^ 3)
                hs = (n >> 2) ^ 1
                fs = list(range(12*hs, 12*hs+12))
                fs = fs[6:] + fs[:6]
                if role == 0:
                    own = list(range(3*n, 3*n+3))
                    assert set(own) <= set(fset)
                    hd = sum([grp(4*(1-side)+g) for g in range(4)], [])
                    seq = own + rotl([s_ for s_ in fset if s_ not in own], r) + rotl(fs[12-EXF:], r) + rotl(hd, r) + rotl(rem[12-EXH:], r)
                else:
                    own = grp(n)
                    seq = own + rotl(fs[:12-EXF], r) + rotl(sorted(rem[:12-EXH]), r)
                assert len(seq) == (KF if role == 0 else KH)
                seqs[(role, n)] = set(seq)
                a.raw(".byte " + ",".join(map(str, seq + [0]*(64-len(seq)))))
    for n in range(8):
        assert seqs[(0, n)] | seqs[(1, n)] == set(range(56)) and not (seqs[(0, n)] & seqs[(1, n)])
    a.raw(".size L_tab, 4096")

def build(opt):
    a = Asm()
    a.raw(HDR.rstrip())
    a.raw(f"; @launch grid=(256,1,1) block=(512,1,1) lds={LDS}")
    a.raw('.amdgcn_target "amdgcn-amd-amdhsa--gfx950"')
    a.raw(".text")
    fused(a, opt)
    a.raw('.section .rodata,"a"')
    a.raw(".p2align 6")
    kd(a, KNAME, 256, 102)
    return a.text()

if __name__ == "__main__":
    opt = {}
    out = sys.argv[1]
    for kv in sys.argv[2:]:
        k, v = kv.split("=", 1)
        opt[k] = v.replace("+", " ")
    open(out, "w").write(build(opt))
```

```python
import sys, re
from gen import STAMP_OFF
src=open(sys.argv[1]).read()
q=sys.argv[3]
role=None
if q[-1] in "FH": role=q[-1]; q=q[:-1]
K="standalone__dense_activation_relu__prompt_kernel"
m=re.search(r"; @launch grid=\(256,1,1\) block=\(512,1,1\) lds=(\d+)\n",src)
lds=m.group(1)
hdr=f"; @launch kernel={K} grid=(256,1,1) block=(512,1,1) lds={lds}\n; @launch kernel=leak_kernel grid=(1,1,1) block=(256,1,1) lds=0\n"
src=src.replace(m.group(0),hdr)
body=""
if q=="none":
    body="    s_mov_b32 s30, 0\n"
elif q=="span":
    body=f"""    v_lshlrev_b32 v1, 4, v0
    v_add_u32 v1, {STAMP_OFF}, v1
    buffer_load_dwordx4 v[4:7], v1, s[12:15], 0 offen
    v_mov_b32 v2, 0
    s_waitcnt vmcnt(0)
    v_not_b32 v8, v4
    buffer_atomic_umax v8, v2, s[8:11], 0 offen
    buffer_atomic_umax v5, v2, s[8:11], 0 offen offset:4
    s_waitcnt vmcnt(0)
    s_barrier
    buffer_load_dwordx2 v[10:11], v2, s[8:11], 0 offen sc0 sc1
    s_waitcnt vmcnt(0)
    v_not_b32 v10, v10
    v_sub_u32 v10, v11, v10
    s_nop 1
    v_readfirstlane_b32 s30, v10
    s_nop 3
    s_mul_i32 s30, s30, 10
"""
else:
    if q=="c": base=STAMP_OFF+8; stride=4
    elif q[0]=="m": base=STAMP_OFF+65536+4*int(q[1:]); stride=5
    elif q[0]=="t": base=STAMP_OFF+81920+4*int(q[1:]); stride=8
    elif q[0]=="p": base=STAMP_OFF+65536+8192+4*int(q[1:]); stride=5
    pre={None:"", "F":"    v_and_b32 v0, 127, v0\n", "H":"    v_or_b32 v0, 128, v0\n"}[role]
    body=pre+f"""    v_lshlrev_b32 v1, {stride}, v0
    v_add_u32 v1, {base}, v1
    buffer_load_dword v4, v1, s[12:15], 0 offen
    v_mov_b32 v2, 0
    s_waitcnt vmcnt(0)
    buffer_atomic_add v4, v2, s[8:11], 0 offen
    s_waitcnt vmcnt(0)
    s_barrier
    buffer_load_dword v10, v2, s[8:11], 0 offen sc0 sc1
    s_waitcnt vmcnt(0)
    v_readfirstlane_b32 s30, v10
    s_nop 3
    s_lshr_b32 s30, s30, 8
"""
extra=f""".globl leak_kernel
.p2align 8
.type leak_kernel,@function
leak_kernel:
    s_cmp_ge_u32 s2, 1
    s_cbranch_scc1 Ll_end
    s_load_dwordx4 s[4:7], s[0:1], 32
    s_waitcnt lgkmcnt(0)
    s_mov_b32 s8, s4
    s_and_b32 s9, s5, 0xffff
    s_mov_b32 s10, 256
    s_mov_b32 s11, 0x20000
    s_mov_b32 s12, s6
    s_and_b32 s13, s7, 0xffff
    s_mov_b32 s14, 0x10000000
    s_mov_b32 s15, 0x20000
{body}    s_min_u32 s30, s30, 100000
    s_memrealtime s[20:21]
    s_waitcnt lgkmcnt(0)
Ll_spin:
    s_memrealtime s[22:23]
    s_waitcnt lgkmcnt(0)
    s_sub_u32 s24, s22, s20
    s_cmp_lt_u32 s24, s30
    s_cbranch_scc1 Ll_spin
Ll_end:
    s_endpgm
"""
kd=""".p2align 6
.amdhsa_kernel leak_kernel
  .amdhsa_next_free_vgpr 16
  .amdhsa_next_free_sgpr 40
  .amdhsa_accum_offset 16
  .amdhsa_group_segment_fixed_size 0
  .amdhsa_kernarg_size 48
  .amdhsa_user_sgpr_count 2
  .amdhsa_user_sgpr_kernarg_segment_ptr 1
  .amdhsa_system_sgpr_workgroup_id_x 1
.end_amdhsa_kernel
"""
src=src.replace('.section .rodata,"a"',extra+'.section .rodata,"a"')+kd
open(sys.argv[2],"w").write(src)
```

```python
import sys
from gen import Asm, vr, srd, interleave, HDR, X_BYTES, W_BYTES, O_BYTES, kd, STAMP_OFF
from gen2 import stamp_start, mark, stamp_end

KNAME = "standalone__dense_activation_relu__prompt_kernel"
SLOT = 32768
R = 5
LDS = R * SLOT
S1 = 49152
HDATA = 917504
HS = 921600
PBASE = 16 * HS
PS = 65536 + 1024
WS_BYTES = PBASE + 128 * PS
BIAS = 0x100
def sl(i): return ((i + 3) % R) * SLOT

def spread(m, o, two=0, start=0):
    out = []; oi = 0
    for i, x in enumerate(m):
        out.append(x)
        if i < start: continue
        for _ in range(2 if i - start < two else 1):
            if oi < len(o): out.append(o[oi]); oi += 1
    out.extend(o[oi:])
    return out

def fused(a, opt):
    SPF = int(opt.get("spf", 1))
    SPF0 = int(opt.get("spf0", 2))
    ROT = int(opt.get("rot", 1))
    ROT1 = int(opt.get("rot1", 1))
    EXF = int(opt.get("exf", 4))
    EXH = int(opt.get("exh", 0))
    EX = EXF + EXH
    KF, KH = 28 + EX, 28 - EX
    assert EX % 2 == 0
    LA = int(opt.get("la", 4))
    WU = 8*(LA-2)
    FA = int(opt.get("fa", 2))
    TWO = int(opt.get("two", 8))
    CPER = int(opt.get("cper", 3))
    sf = opt.get("sf", "sc1")
    lf1 = opt.get("lf1", "sc1")
    NOR = opt.get("nords"); NOM = opt.get("nomfma"); NOL = opt.get("noload")
    a.raw(f".globl {KNAME}")
    a.raw(".p2align 8")
    a.raw(f".type {KNAME},@function")
    a.label(KNAME)
    a("s_cmp_ge_u32 s2, 256")
    a("s_cbranch_scc1 L_end")
    stamp_start(a, opt)
    a("s_load_dwordx8 s[80:87], s[0:1], 0")
    a("s_load_dwordx4 s[4:7], s[0:1], 32")
    a("v_lshrrev_b32 v1, 6, v0")
    a("v_and_b32 v0, 63, v0")
    a("s_and_b32 s10, s2, 7")
    a("v_readfirstlane_b32 s12, v1")
    a("s_lshr_b32 s11, s2, 3")
    a("s_and_b32 s13, s10, 3")
    a("s_lshl_b32 s13, s13, 2")
    a("s_and_b32 s14, s11, 3")
    a("s_add_u32 s13, s13, s14")
    a("s_lshr_b32 s41, s10, 2")
    a("s_lshr_b32 s10, s11, 4")
    a("s_xor_b32 s14, s41, s10")
    a("s_lshl_b32 s14, s14, 2")
    a("s_lshr_b32 s11, s11, 2")
    a("s_and_b32 s11, s11, 3")
    a("s_add_u32 s11, s11, s14")
    a(f"s_mul_i32 s15, s13, {HS}")
    a(f"s_add_u32 s48, s15, {HDATA}")
    a("s_lshl_b32 s49, s13, 4")
    a("s_cmp_ge_u32 s12, 4")
    a("s_cbranch_scc1 L_prod")
    FR = [128, 176]
    XA = 224; WA = 226
    ACC = 0
    BUF = [64, 128]
    A1 = 234; AW = 236
    VL = 240; AHP = 241; VOUT = 242; VA = 243; V1 = 244
    T = 245
    VG = 253
    PK = 192
    a(f"v_mov_b32 v{VL}, v0")
    a("s_and_b32 s28, s12, 1")
    a("s_lshr_b32 s29, s12, 1")
    a(f"v_and_b32 v{T}, 15, v{VL}")
    a(f"v_lshrrev_b32 v{T+1}, 4, v{VL}")
    a(f"v_lshrrev_b32 v{T+2}, 1, v{T}")
    a(f"v_xor_b32 v{T+2}, v{T+1}, v{T+2}")
    a(f"v_lshlrev_b32 v{T+2}, 4, v{T+2}")
    a(f"v_lshl_add_u32 v{T+2}, v{T}, 7, v{T+2}")
    a("s_lshl_b32 s30, s28, 13")
    a(f"s_add_u32 s31, s30, {S1}")
    a(f"v_add_u32 v{XA}, s31, v{T+2}")
    a(f"v_xor_b32 v{XA+1}, 64, v{XA}")
    a(f"v_lshl_add_u32 v{VG}, v{VL}, 4, s30")
    a(f"v_add_u32 v{VG+1}, 4096, v{VG}")
    a(f"v_add_u32 v{A1}, {sl(0)}, v{VG}")
    a(f"v_add_u32 v{A1+1}, 1024, v{A1}")
    a("s_lshl_b32 s30, s12, 13")
    a(f"v_lshl_add_u32 v{AHP}, v{VL}, 4, s30")
    a(f"v_lshrrev_b32 v{T+2}, 2, v{VL}")
    a(f"v_and_b32 v{T+2}, 3, v{T+2}")
    a(f"v_lshl_add_u32 v{T+3}, v{T+1}, 3, v{T+2}")
    a(f"v_and_b32 v{T+4}, 3, v{VL}")
    a(f"v_lshlrev_b32 v{T+4}, 3, v{T+4}")
    a(f"v_add_u32 v{T+4}, {16384+S1}, v{T+4}")
    a(f"v_and_b32 v{T+5}, 1, v{T+1}")
    a(f"v_lshl_or_b32 v{T+6}, v{T+5}, 2, v{T+2}")
    a("s_lshl_b32 s30, s29, 2")
    a(f"v_xor_b32 v{T+7}, s30, v{T+6}")
    a(f"v_lshl_add_u32 v{AW}, v{T+3}, 8, v{T+4}")
    a(f"v_lshl_add_u32 v{AW}, v{T+7}, 5, v{AW}")
    a(f"v_add_u32 v{AW}, {sl(0)-S1}, v{AW}")
    for t in range(1, 4):
        a(f"v_xor_b32 v{AW+t}, {t*32}, v{AW}")
    a("s_lshl_b32 s30, s13, 7")
    a("s_lshl_b32 s31, s28, 6")
    a("s_add_u32 s30, s30, s31")
    a(f"v_add_u32 v{T}, s30, v{T}")
    a(f"v_lshlrev_b32 v{T}, 11, v{T}")
    a(f"v_lshl_add_u32 v{T}, v{T+5}, 5, v{T}")
    a(f"v_lshrrev_b32 v{T+7}, 1, v{T+1}")
    a(f"v_lshl_add_u32 v{T}, v{T+7}, 4, v{T}")
    a("s_lshl_b32 s30, s11, 8")
    a("s_lshl_b32 s31, s29, 7")
    a("s_add_u32 s30, s30, s31")
    a(f"v_add_u32 v{VOUT}, s30, v{T}")
    a(f"v_mov_b32 v{V1}, 1")
    a(f"s_mov_b32 s32, {S1}")
    a(f"s_mov_b32 s33, {-2*S1 & 0xffffffff}")
    a("s_mov_b32 s34, 1")
    a("s_mov_b32 s35, 15")
    a("s_waitcnt lgkmcnt(0)")
    a("s_mov_b32 s8, s6")
    a("s_mov_b32 s9, s7")
    srd(a, 24, 6, 7, WS_BYTES)
    srd(a, 20, 86, 87, O_BYTES)
    for i in range(96):
        a(f"v_mov_b32 v{i}, 0")
    a("s_or_b32 s30, s10, s11")
    a("s_or_b32 s30, s30, s12")
    a("s_cmp_eq_u32 s30, 0")
    a("s_cbranch_scc0 L_noinit")
    a("s_mov_b32 s50, 1")
    for q in range(12):
        a(f"s_movk_i32 s{88+q}, {BIAS}")
        a(f"s_atomic_swap s{88+q}, s[6:7], s48 offset:{q*128} glc")
    a("s_waitcnt lgkmcnt(0)")
    a("s_atomic_add s50, s[4:5], s49")
    a.label("L_noinit")
    def adv(regs, ring):
        return ["s_add_u32 s34, s34, 1", f"s_cmp_eq_u32 s34, {ring}", "s_cselect_b32 s36, s33, s32",
                "s_cselect_b32 s34, 0, s34"] + [f"v_add_u32 v{r}, s36, v{r}" for r in regs]
    def endstage(bar=True):
        a("s_waitcnt lgkmcnt(0)")
        if bar: a("s_barrier")
    a("s_cmp_eq_u32 s10, 1")
    a("s_cbranch_scc1 L_g1H")
    def g1(NT, tag):
        P = 64*NT
        NP = NT//2
        if NT == 8:
            a("s_lshl_b32 s30, s29, 8")
            a(f"v_lshl_add_u32 v{WA}, v{T+3}, 9, v{T+4}")
            a(f"v_lshl_add_u32 v{WA}, v{T+6}, 5, v{WA}")
            a(f"v_add_u32 v{WA}, s30, v{WA}")
            for t in range(1, 8):
                a(f"v_xor_b32 v{WA+t}, {t*32}, v{WA}")
            for i in range(96, 128):
                a(f"v_mov_b32 v{i}, 0")
            a(f"s_mul_i32 s30, s13, {8*PS}")
            a(f"s_mul_i32 s31, s11, {PS}")
            a("s_add_u32 s30, s30, s31")
            a(f"s_add_u32 s30, s30, {PBASE}")
            a(f"v_add_u32 v{VOUT}, s30, v{AHP}")
            a("s_lshl_b32 s37, s11, 16")
            a(f"s_add_u32 s37, s37, {24*16384}")
        else:
            a(f"v_lshrrev_b32 v{T+7}, 1, v{T+2}")
            a(f"v_lshl_or_b32 v{T+7}, v{T+5}, 1, v{T+7}")
            a(f"v_mul_u32_u24 v{T}, 384, v{T+3}")
            a(f"v_add_u32 v{T}, v{T}, v{T+4}")
            a("s_mul_i32 s30, s29, 6")
            for t in range(6):
                a(f"v_xor_b32 v{WA+t}, s30, v{T+7}")
                a(f"v_lshl_add_u32 v{WA+t}, v{WA+t}, 5, v{T}")
                a("s_add_u32 s30, s30, 1")
            a("s_mul_i32 s37, s11, %d" % (3*16384))
        a("s_lshl_b32 s30, s41, 7")
        a("s_add_u32 s30, s30, s48")
        if NT == 8: a("s_add_u32 s30, s30, 256")
        a(f"v_mov_b32 v{VA}, s30")
        AD = int(opt.get('ad'+tag, -1 if NT == 6 else 1))
        a(f"s_mov_b32 s41, {AD}")
        a("s_add_u32 s37, s37, s15")
        a("s_cmp_eq_u32 s29, 0")
        for pp in range(NP):
            p0, p1 = pp, NP + pp
            a(f"s_mov_b32 s30, {sl(p1>>1) + (p1&1)*1024}")
            a(f"s_cselect_b32 s30, {sl(p0>>1) + (p0&1)*1024}, s30")
            a(f"v_add_u32 v{T+pp}, s30, v{VG}")
            a(f"s_mov_b32 s{44+pp}, {(p1>>1)*16384 + (p1&1)*1024}")
            a(f"s_cselect_b32 s{44+pp}, {(p0>>1)*16384 + (p0&1)*1024}, s{44+pp}")
        for pp in range(NP):
            a(f"s_add_u32 s{44+pp}, s{44+pp}, s37")
        def reads(kk):
            fb = FR[kk]; r = []
            if NOR: return r
            r.append(f"ds_read_b128 {vr(fb,4)}, v{XA+kk} offset:0")
            for t in range(NT):
                for hh in range(2):
                    r.append(f"ds_read_b64_tr_b16 {vr(fb+16+4*t+2*hh,2)}, v{WA+t} offset:{(32*kk+4*hh)*P}")
            for mi in range(1, 4):
                r.append(f"ds_read_b128 {vr(fb+4*mi,4)}, v{XA+kk} offset:{mi*2048}")
            return r
        def mm1(kk, mi, t):
            if NOM: return "s_nop 0"
            fb = FR[kk]; acc = 4*(mi*NT + t)
            return f"v_mfma_f32_16x16x32_bf16 {vr(acc,4)}, {vr(fb+16+4*t,4)}, {vr(fb+4*mi,4)}, {vr(acc,4)}"
        def mm(kk):
            return [mm1(kk, mi, t) for mi in range(4) for t in range(NT)]
        mark(a, opt, 0)
        a("s_barrier")
        mark(a, opt, 1)
        for s in reads(0): a(s)
        endstage(False)
        a.raw(".p2align 6")
        a.label(f"L1{tag}")
        o = reads(1) + adv([XA, XA+1] + list(range(WA, WA+NT)), 3) + ["s_sub_u32 s35, s35, 1", "s_cmp_eq_u32 s35, 0"]
        for s in spread(mm(0), o, two=TWO): a(s)
        endstage()
        for s in spread(mm(1), reads(0), two=int(opt.get("two1", 0))): a(s)
        endstage(False)
        a(f"s_cbranch_scc0 L1{tag}")
        mark(a, opt, 2)
        for s in spread([mm1(0, mi, t) for mi in range(FA) for t in range(NT)], reads(1), two=12): a(s)
        endstage()
        seq = [(1, mi, t) for mi in range(FA) for t in range(NT)]
        for mi in range(FA, 4):
            seq += [(0, mi, t) for t in range(NT)] + [(1, mi, t) for t in range(NT)]
        def unit(mi, pp):
            acc = 8*(mi*NP + pp); cv = []
            for e in range(8):
                cv.append(f"v_maximum3_f32 v{acc+e}, v{acc+e}, 0, 0")
            for e in range(4):
                cv.append(f"v_cvt_pk_bf16_f32 v{acc+e}, v{acc+2*e}, v{acc+2*e+1}")
            if not opt.get("nostore"):
                cv.append(f"buffer_store_dwordx4 {vr(acc,4)}, v{VG+(mi>>1)}, s[24:27], s{44+pp} offen offset:{(mi&1)*2048} {sf}")
            cv.append(f"ds_write_b128 v{T+pp}, {vr(acc,4)} offset:{mi*2048}")
            return cv
        out = []; ready = {}; pend = [(mi, pp) for mi in range(4) for pp in range(NP)]; cur = []
        def pull():
            if not cur and pend and pend[0] in ready and len(out) - ready[pend[0]] >= 9:
                cur.extend(unit(*pend.pop(0)))
            if cur: out.append(cur.pop(0)); return True
            return False
        for (kk, mi, t) in seq:
            out.append(mm1(kk, mi, t))
            if kk == 1 and (t & 1): ready[(mi, t >> 1)] = len(out)
            for _ in range(CPER):
                if not pull(): break
        while cur or pend:
            if not pull(): out.append("s_nop 0")
        for s in out: a(s)
        if AD < 0:
            a("s_waitcnt vmcnt(0)")
            a("s_mov_b64 exec, 1")
            a(f"buffer_atomic_add v{V1}, v{VA}, s[24:27], 0 offen sc1")
            a("s_mov_b64 exec, -1")
            mark(a, opt, 6)
        a(f"s_mov_b32 s35, {(KH if NT == 8 else KF)//2}")
    g1(6, "F")
    a("s_branch L_g2")
    a.label("L_g1H")
    g1(8, "H")
    a.label("L_g2")
    a(f"s_mov_b32 s32, {SLOT}")
    a(f"s_mov_b32 s33, {-(R-1)*SLOT & 0xffffffff}")
    a("s_mov_b32 s34, 3")
    endstage()
    mark(a, opt, 3)
    def rdU(b):
        r = []
        for kk in range(2):
            fb = BUF[b] + 32*kk
            if NOR: continue
            r.append(f"ds_read_b128 {vr(fb,4)}, v{A1+kk} offset:0")
            for t in range(4):
                for hh in range(2):
                    r.append(f"ds_read_b64_tr_b16 {vr(fb+16+4*t+2*hh,2)}, v{AW+t} offset:{(32*kk+4*hh)*256}")
            for mi in range(1, 4):
                r.append(f"ds_read_b128 {vr(fb+4*mi,4)}, v{A1+kk} offset:{mi*2048}")
        return r + adv(range(A1, A1+6), R)
    def mmU(b):
        m = []
        if NOM: return ["s_nop 0"]*32
        for kk in range(2):
            fb = BUF[b] + 32*kk
            for mi in range(4):
                for t in range(4):
                    acc = ACC + 4*(mi*4+t)
                    m.append(f"v_mfma_f32_16x16x32_bf16 {vr(acc,4)}, {vr(fb+16+4*t,4)}, {vr(fb+4*mi,4)}, {vr(acc,4)}")
        return m
    for s in rdU(0): a(s)
    for i in range(64):
        a(f"v_mov_b32 v{ACC+i}, 0")
    endstage()
    a("s_branch LU_mid")
    a.raw(".p2align 6")
    a.label("LU_loop")
    TU = int(opt.get("twou", 0))
    for s in spread(mmU(1), rdU(0), two=TU): a(s)
    endstage()
    a.label("LU_mid")
    for s in spread(mmU(0), rdU(1), two=TU): a(s)
    a("s_sub_u32 s41, s41, 1")
    a("s_cbranch_scc0 L_nwU")
    a("s_waitcnt vmcnt(0)")
    a("s_mov_b64 exec, 1")
    a(f"buffer_atomic_add v{V1}, v{VA}, s[24:27], 0 offen sc1")
    a("s_mov_b64 exec, -1")
    mark(a, opt, 6)
    a.label("L_nwU")
    a("s_sub_u32 s35, s35, 1")
    a("s_cmp_eq_u32 s35, 0")
    endstage()
    a("s_cbranch_scc0 LU_loop")
    mmt = mmU(1)
    mmt = [mmt[k] for t in range(16) for k in (t, 16+t)]
    a("s_cmp_eq_u32 s10, 0")
    a("s_cbranch_scc1 L_finF")
    a("s_movk_i32 s38, 4096")
    a("s_mov_b32 s39, 32768")
    a(f"s_mov_b32 s41, {32768+4096}")
    st = []
    for q in range(16):
        so = ["0", "s38", "s39", "s41"][q >> 2]
        st.append(f"buffer_store_dwordx4 {vr(ACC+4*q,4)}, v{VOUT}, s[24:27], {so} offen offset:{(q&3)*1024} {sf}")
    a("s_lshl_b32 s30, s11, 7")
    a("s_add_u32 s30, s30, s48")
    a("s_add_u32 s30, s30, 512")
    a(f"v_mov_b32 v{VA}, s30")
    for k, x in enumerate(mmt):
        a(x)
        if k >= 11 and (k & 1): a(st.pop(0))
    mark(a, opt, 4)
    a("s_nop 7")
    PH = int(opt.get("ph", 2))
    while len(st) > PH: a(st.pop(0))
    a(f"s_waitcnt vmcnt({8-PH})")
    a("s_mov_b64 exec, 1")
    a(f"buffer_atomic_add v{V1}, v{VA}, s[24:27], 0 offen sc1")
    a("s_mov_b64 exec, -1")
    for x in st: a(x)
    a(f"v_mov_b32 v{V1}, 16")
    a("s_waitcnt vmcnt(0)")
    a("s_mov_b64 exec, 1")
    a(f"buffer_atomic_add v{V1}, v{VA}, s[24:27], 0 offen sc1")
    a("s_mov_b64 exec, -1")
    mark(a, opt, 5)
    a.label("L_finH")
    stamp_end(a, opt, 0, 0, vt=64)
    a("s_endpgm")
    a.label("L_finF")
    a(f"v_add_u32 v{T}, {sl(KF)}, v{AHP}")
    a(f"v_add_u32 v{T+1}, {sl(KF+1)}, v{AHP}")
    a("s_mov_b32 s32, 32768")
    a("s_mov_b32 s33, 65536")
    a("s_mov_b32 s34, 98304")
    of = opt.get("of", "")
    def fin(u):
        mi, p = u >> 1, u & 1
        acc = ACC + 8*u; pk = PK + 4*u; r = []
        for e in range(8):
            r.append(f"v_add_f32 v{acc+e}, v{acc+e}, v{BUF[0]+8*u+e}")
        for e in range(4):
            r.append(f"v_cvt_pk_bf16_f32 v{pk+e}, v{acc+2*e}, v{acc+2*e+1}")
        r.append("s_nop 1")
        r.append(f"v_permlane16_swap_b32 v{pk}, v{pk+2}")
        r.append(f"v_permlane16_swap_b32 v{pk+1}, v{pk+3}")
        so = ["0", "s32", "s33", "s34"][mi]
        r.append(f"buffer_store_dwordx4 {vr(pk,4)}, v{VOUT}, s[20:23], {so} offen offset:{p*64} {of}")
        return r
    p0 = [f"ds_read_b128 {vr(BUF[0]+4*q,4)}, v{T} offset:{q*1024}" for q in range(8)]
    p1 = [f"ds_read_b128 {vr(BUF[0]+32+4*q,4)}, v{T+1} offset:{q*1024}" for q in range(8)]
    for x in mmt[:16]: a(x)
    mark(a, opt, 4)
    a("s_barrier")
    for x in interleave(mmt[16:], p0): a(x)
    a("s_waitcnt lgkmcnt(0)")
    for x in fin(0)+fin(1)+fin(2): a(x)
    mark(a, opt, 7)
    a("s_barrier")
    for x in p1: a(x)
    for x in fin(3): a(x)
    a("s_waitcnt lgkmcnt(0)")
    for u in range(4, 8):
        for x in fin(u): a(x)
    mark(a, opt, 5)
    a("s_branch L_finH")
    a.label("L_prod")
    a("s_sub_u32 s3, s12, 4")
    a("s_add_u32 s40, s13, s11")
    a("s_and_b32 s40, s40, 3")
    a("s_getpc_b64 s[42:43]")
    a.label("L_pc2")
    a("s_lshl_b32 s29, s10, 3")
    a("s_add_u32 s29, s29, s11")
    a("s_lshl_b32 s29, s29, 2")
    a("s_add_u32 s29, s29, s40")
    a("s_lshl_b32 s29, s29, 6")
    a("s_add_u32 s29, s29, L_tab-L_pc2")
    a("v_add_u32 v6, s29, v0")
    a("global_load_ubyte v46, v6, s[42:43]")
    a("v_lshrrev_b32 v1, 3, v0")
    a("v_and_b32 v2, 7, v0")
    a("v_lshrrev_b32 v3, 4, v0")
    a("v_xor_b32 v2, v2, v3")
    a("s_lshl_b32 s28, s13, 7")
    a("s_lshl_b32 s29, s3, 5")
    a("s_add_u32 s28, s28, s29")
    a("v_add_u32 v1, s28, v1")
    a("v_lshlrev_b32 v1, 11, v1")
    a("v_lshl_add_u32 v8, v2, 4, v1")
    a("v_xor_b32 v9, 64, v8")
    a(f"v_add_u32 v9, {16384-1024}, v9")
    a(f"v_add_u32 v10, {32768-2048}, v8")
    a(f"v_add_u32 v11, {32768-2048}, v9")
    a("s_lshl_b32 s30, s3, 12")
    a("v_subrev_u32 v5, s40, v0")
    a("v_and_b32 v5, 3, v5")
    a("v_cmp_eq_u32 vcc, 0, v5")
    a(f"v_mov_b32 v5, {-1 if ROT1 else 0}")
    a("v_add_u32 v7, 1, v0")
    a(f"v_cndmask_b32 v5, v5, {3 if ROT1 else 0}, vcc")
    a("v_mul_u32_u24 v42, 21846, v7")
    a("v_add_u32 v5, v5, v0")
    a(f"v_and_b32 v5, {3 if opt.get('small') else 15}, v5")
    a("v_lshlrev_b32 v40, 7, v5")
    a(f"v_mul_u32_u24 v41, {64*7168//1024}, v5")
    a("v_lshlrev_b32 v41, 10, v41")
    a("v_lshrrev_b32 v42, 16, v42")
    a("v_mul_u32_u24 v42, 3, v42")
    a("v_sub_u32 v42, v7, v42")
    a("v_mul_u32_u24 v42, 48, v42")
    a("v_lshl_add_u32 v42, v42, 10, s30")
    a("s_mul_i32 s28, s3, %d" % (16*7168))
    a("s_movk_i32 s29, 7168")
    a("s_mov_b32 s35, 0")
    a("v_readlane_b32 s32, v40, 0")
    a("v_readlane_b32 s33, v41, 0")
    a(f"s_add_u32 m0, s30, {S1}")
    a("s_lshl_b32 s38, s2, 2")
    a("s_add_u32 s38, s38, s3")
    a("s_lshl_b32 s38, s38, 9")
    if SPF0: a(f"s_sub_u32 s38, s38, {SPF0*524288}")
    a("s_mov_b32 s93, 1")
    a("s_mov_b32 s51, 0")
    a("s_mov_b32 s98, 0")
    a("s_cmp_eq_u32 s10, 1")
    a("s_cbranch_scc1 L_p1H")
    def trace():
        if opt.get("trace"):
            a("s_sub_u32 s76, s78, s62")
            a("v_cmp_eq_u32 vcc, s77, v0")
            a("v_mov_b32 v62, s76")
            a("s_add_u32 s77, s77, 1")
            a("v_cndmask_b32 v60, v60, v62, vcc")
            a("s_memtime s[78:79]")
    def tmo(lab):
        if opt.get("tmo"):
            a("s_add_u32 s98, s98, 1")
            a("s_cmp_gt_u32 s98, 20000")
            a(f"s_cbranch_scc1 {lab}")
    def ldW(i):
        a(f"s_add_u32 m0, s30, {sl(i)+16384}")
        a("s_nop 0")
        for b in range(4):
            if not NOL: a(f"buffer_load_dwordx4 v{12+b}, s[20:23], s{80+i} offen offset:{b*1024} lds")
    def ldH(i, sreg):
        a(f"s_add_u32 m0, s30, {sl(i)}")
        a("s_nop 0")
        for b in range(4):
            if not NOL: a(f"buffer_load_dwordx4 v8, s[16:19], s{sreg} offen offset:{b*1024} {lf1} lds")
    def gate(tag):
        a("s_cmp_eq_u32 s3, 0")
        a(f"s_cbranch_scc0 L_gok{tag}")
        a.label(f"L_g{tag}")
        a("s_waitcnt lgkmcnt(0)")
        a("s_cmp_eq_u32 s50, s53")
        a(f"s_cbranch_scc1 L_gok{tag}")
        tmo(f"L_gok{tag}")
        a("s_mov_b32 s50, 0")
        a("s_atomic_add s50, s[6:7], s52 glc")
        a(f"s_branch L_g{tag}")
        a.label(f"L_gok{tag}")
    def p1(NT, tag):
        NP = NT//2
        if NT == 8:
            a("v_lshrrev_b32 v1, 5, v0")
            a("v_and_b32 v2, 31, v0")
            a("v_lshlrev_b32 v4, 1, v1")
            a("v_xor_b32 v2, v2, v4")
            a("v_mul_u32_u24 v1, s29, v1")
            a("v_lshl_add_u32 v1, v2, 4, v1")
            a("s_lshl_b32 s31, s11, 9")
            a("s_add_u32 s31, s31, s28")
            a("s_add_u32 s31, s31, 3072")
            a("v_add_u32 v12, s31, v1")
            for b in range(1, 8):
                x = ((b & 1) << 6) | ((b >> 2) << 7)
                a(f"v_xor_b32 v{12+b}, {x}, v12")
                a(f"v_add_u32 v{12+b}, {2*b*7168 - (b & 3)*1024}, v{12+b}")
        else:
            a("s_mul_i32 s31, s11, 384")
            a("s_add_u32 s31, s31, s28")
            for b in range(3):
                a(f"v_add_u32 v1, {64*b}, v0")
                a("v_mul_u32_u24 v2, 2731, v1")
                a("v_lshrrev_b32 v2, 16, v2")
                a("v_mul_u32_u24 v4, 24, v2")
                a("v_sub_u32 v4, v1, v4")
                a("v_and_b32 v5, 2, v2")
                a("v_xor_b32 v4, v4, v5")
                a("v_mul_u32_u24 v2, s29, v2")
                a(f"v_add_u32 v2, s31, v2")
                a(f"v_lshl_add_u32 v{12+b}, v4, 4, v2")
                a("v_xor_b32 v4, 4, v4")
                a(f"v_lshl_add_u32 v{15+b}, v4, 4, v2")
                if b: a(f"v_subrev_u32 v{12+b}, {b*1024}, v{12+b}")
                a(f"v_add_u32 v{15+b}, {8*7168 - ((b+3) & 3)*1024}, v{15+b}")
        a(f"s_mul_i32 s31, s3, {NT*1024-4096}")
        a("s_add_u32 s31, s31, 16384")
        a("s_waitcnt lgkmcnt(0)")
        a("s_mov_b32 s8, s6")
        a("s_mov_b32 s9, s7")
        srd(a, 16, 80, 81, X_BYTES)
        srd(a, 20, 82, 83, W_BYTES)
        srd(a, 44, 84, 85, W_BYTES if SPF else 0)
        srd(a, 24, 6, 7, WS_BYTES)
        if int(opt.get("tlb", 0)):
            a(f"s_cmp_eq_u32 s3, {int(opt.get('tlbw', 3))}")
            a(f"s_cbranch_scc0 LQn{tag}")
            a("s_buffer_load_dword s99, s[24:27], s48 offset:3072")
            a("s_sub_u32 s28, s15, 1024")
            a("s_buffer_load_dword s99, s[24:27], s28")
            a("s_lshl_b32 s28, s13, 3")
            a("s_add_u32 s28, s28, s11")
            a(f"s_mul_i32 s28, s28, {PS}")
            a(f"s_add_u32 s28, s28, {PBASE-512}")
            a("s_buffer_load_dword s99, s[24:27], s28")
            a(f"s_buffer_load_dword s99, s[24:27], s28 offset:{PS}")
            if NT == 6:
                a("s_lshl_b32 s28, s13, 18")
                a("s_lshl_b32 s29, s11, 8")
                a("s_add_u32 s28, s28, s29")
                a("s_load_dword s99, s[86:87], s28")
        a(f"s_branch LQn{tag}")
        a.raw(".p2align 6")
        a.label(f"LQ{tag}")
        a(f"s_waitcnt vmcnt({4+NT})")
        a("s_barrier")
        a.label(f"LQn{tag}")
        trace()
        for j in range(4):
            if not NOL: a(f"buffer_load_dwordx4 v{8+j}, s[16:19], s32 offen offset:{j*1024} lds")
            if j == 0: a("s_add_u32 s35, s35, 1")
            if j == 1: a("v_readlane_b32 s94, v40, s35")
            if j == 2: a("v_readlane_b32 s95, v41, s35")
            a(f"s_buffer_load_dword s99, s[44:47], s38 offset:{j*128}")
            a(f"s_buffer_load_dword s99, s[44:47], s38 offset:{j*128+64}")
        a("s_add_u32 m0, m0, s31")
        a("v_readlane_b32 s96, v42, s35")
        for b in range(NT):
            if b == 4:
                a("s_add_u32 m0, m0, 4096")
                a("s_add_u32 s38, s38, 524288")
            if b == NT-1: a("s_cmp_lt_u32 s35, 2")
            if not NOL: a(f"buffer_load_dwordx4 v{12+b}, s[20:23], s33 offen offset:{(b&3)*1024} lds")
        a("s_mov_b64 s[32:33], s[94:95]")
        a("s_mov_b32 m0, s96")
        a(f"s_cbranch_scc1 LQn{tag}")
        a("s_cmp_eq_u32 s35, 8")
        a(f"s_cbranch_scc1 L_ev{tag}")
        a.label(f"L_evr{tag}")
        a("s_cmp_lt_u32 s35, 16")
        a(f"s_cbranch_scc1 LQ{tag}")
        mark(a, opt, 0)
        a("s_add_u32 s29, s15, s30")
        a(f"v_lshl_add_u32 v8, v0, 4, s29")
        a("v_and_b32 v1, 15, v0")
        a("v_lshlrev_b32 v2, 1, v3")
        a("v_xor_b32 v4, v1, v2")
        a("v_lshlrev_b32 v1, 11, v3")
        a("v_lshl_add_u32 v1, v4, 4, v1")
        a("s_lshr_b32 s28, s3, 1")
        a("s_lshl_b32 s28, s28, 16")
        a("s_and_b32 s29, s3, 1")
        a("s_lshl_b32 s29, s29, 14")
        a("s_add_u32 s28, s28, s29")
        a("s_lshl_b32 s29, s11, 8")
        a("s_add_u32 s28, s28, s29")
        a("v_add_u32 v12, s28, v1")
        a(f"v_add_u32 v13, {16*2048-1024}, v12")
        a("v_xor_b32 v14, 128, v12")
        a(f"v_add_u32 v14, {4*2048-2048}, v14")
        a(f"v_add_u32 v15, {16*2048-1024}, v14")
        if opt.get("small"): a("v_and_b32 v46, 3, v46")
        a("v_lshlrev_b32 v40, 14, v46")
        a("v_lshlrev_b32 v41, 17, v46")
        a("v_add_u32 v7, 3, v0")
        a("v_mul_u32_u24 v42, 13108, v7")
        a("v_lshrrev_b32 v42, 16, v42")
        a("v_mul_u32_u24 v42, 5, v42")
        a("v_sub_u32 v42, v7, v42")
        a("v_lshl_add_u32 v42, v42, 15, s30")
        a("s_mov_b64 s[16:17], s[24:25]")
        a("s_mov_b32 s18, s26")
        a("s_mov_b64 s[20:21], s[44:45]")
        NW = LA + 2 if NT == 6 else 5
        for e in range(NW):
            a(f"v_readlane_b32 s{80+e}, v41, {e}")
        for e in range(NP, NW):
            a(f"v_readlane_b32 s{88+e-3}, v40, {e}")
        a(f"v_readlane_b32 s32, v40, {NW}")
        a(f"v_readlane_b32 s33, v41, {NW}")
        a("s_lshl_b32 s52, s41, 7")
        a("s_add_u32 s52, s52, s48")
        a(f"s_movk_i32 s53, {BIAS+16}")
        a("s_mov_b32 s50, 1")
        a(f"s_waitcnt vmcnt({4+NT})")
        a("s_barrier")
        ldW(0); ldW(1)
        a("s_cmp_eq_u32 s3, 0")
        a(f"s_cbranch_scc0 L_iok{tag}")
        a.label(f"L_ic{tag}")
        a("s_cmp_eq_u32 s51, 1")
        a(f"s_cbranch_scc1 L_iok{tag}")
        a("s_waitcnt lgkmcnt(0)")
        a("s_cmp_eq_u32 s51, 1")
        a(f"s_cbranch_scc1 L_iok{tag}")
        tmo(f"L_iok{tag}")
        a("s_mov_b32 s51, 0")
        a("s_atomic_add s51, s[4:5], s49 glc")
        a(f"s_branch L_ic{tag}")
        a.label(f"L_iok{tag}")
        a(f"s_waitcnt vmcnt({0 if NOL else 8})")
        a("s_barrier")
        ldW(2)
        a("s_barrier")
        ldW(3); ldW(4)
        if NT == 8:
            mark(a, opt, 2)
            gate(tag)
            mark(a, opt, 3)
        a("s_waitcnt vmcnt(0)")
        a("s_barrier")
        mark(a, opt, 1)
        if NT == 8:
            ldH(4, 89)
            a("s_barrier")
            if LA == 3: a("s_barrier")
        else:
            a("s_barrier")
            if LA == 4: ldW(5)
            mark(a, opt, 2)
            gate(tag)
            mark(a, opt, 3)
            a("s_barrier")
            for e in range(NP, NW): ldH(e, 88+e-3)
        q = []
        if NT == 6:
            if EXF: q.append(("x", 0, 11))
            q.append(("s", 256, 11+EXF))
            if EXH: q.append(("x", 256, 27+EXF))
        else:
            q.append(("s", 256, 15-EXF))
        a("s_xor_b32 s58, s52, 128")
        a("s_mov_b32 s59, s52")
        for k, b in enumerate((52, 80, 84)):
            if k < len(q):
                a(f"s_add_u32 s{b}, s{58 if q[k][0] == 'x' else 59}, {q[k][1]}")
                a(f"s_movk_i32 s{b+1}, {BIAS+16}")
                a(f"s_mov_b32 s{b+2}, {max(NW+1, q[k][2]-int(opt.get('pw', 5)))}")
                a(f"s_mov_b32 s{b+3}, {q[k][2]}")
            else:
                a(f"s_mov_b64 s[{b}:{b+1}], -1")
                a(f"s_mov_b64 s[{b+2}:{b+3}], -1")
        a(f"s_mov_b32 s42, {KF if NT == 6 else KH}")
        a(f"s_mov_b32 s56, {'0' if (LA == 4 and NT == 6) else 's42'}")
        a(f"s_mov_b32 s35, {NW}")
        a(f"s_add_u32 m0, s30, {sl(NW)}")
        if NT == 6: a(f"s_waitcnt vmcnt({0 if NOL else 4*(LA-2)})")
    p1(6, "F")
    a("s_branch L_p2")
    for tag in "FH":
        a.label(f"L_ev{tag}")
        a("s_cmp_eq_u32 s3, 0")
        a(f"s_cbranch_scc0 L_evr{tag}")
        a("s_atomic_add s51, s[4:5], s49 glc")
        a(f"s_branch L_evr{tag}")
    a.label("L_p1H")
    p1(8, "H")
    a.label("L_p2")
    a("s_mov_b32 s50, 1")
    a("s_cmp_eq_u32 s3, 0")
    a("s_cselect_b32 s54, s54, -1")
    a("s_branch LP_bar")
    a.raw(".p2align 6")
    a.label("LP")
    a(f"s_waitcnt vmcnt({WU})")
    a.label("LP_bar")
    a("s_barrier")
    a.label("LP_nb")
    trace()
    def ld1(j):
        if not NOL: a(f"buffer_load_dwordx4 v8, s[16:19], s32 offen offset:{j*1024} {lf1} lds")
    def ld2(b):
        if not NOL: a(f"buffer_load_dwordx4 v{12+b}, s[20:23], s33 offen offset:{b*1024} lds")
    ld1(0)
    a("s_cmp_eq_u32 s35, s54")
    a("s_cbranch_scc1 L_pv")
    a.label("L_pvret")
    a("s_add_u32 s35, s35, 1")
    ld1(1)
    a("v_readlane_b32 s94, v40, s35")
    ld1(2)
    a("v_readlane_b32 s95, v41, s35")
    ld1(3)
    a("s_add_u32 m0, m0, 16384")
    a("v_readlane_b32 s96, v42, s35")
    for b in range(4):
        if b == 3: a("s_cmp_lt_u32 s35, s56")
        ld2(b)
    a("s_mov_b64 s[32:33], s[94:95]")
    a("s_mov_b32 m0, s96")
    a("s_cbranch_scc1 LP")
    a("s_cmp_eq_u32 s35, 7")
    a("s_cbranch_scc0 L_pdone")
    a("s_mov_b32 s56, s42")
    a("s_waitcnt vmcnt(12)")
    a("s_branch LP_bar")
    a.label("L_pv")
    a("s_cmp_eq_u32 s50, s53")
    a("s_cbranch_scc1 L_gok")
    a("s_cmp_eq_u32 s35, s55")
    a("s_cbranch_scc1 L_gate")
    a("s_add_u32 s54, s35, 1")
    a("s_cmp_eq_u32 s50, 0")
    a("s_cbranch_scc1 L_pvret")
    a("s_mov_b32 s50, 0")
    a("s_atomic_add s50, s[6:7], s52 glc")
    a("s_branch L_pvret")
    a.label("L_gate")
    a("s_waitcnt lgkmcnt(0)")
    a("s_cmp_eq_u32 s50, s53")
    a("s_cbranch_scc1 L_gok")
    tmo("L_gok")
    a("s_mov_b32 s50, 0")
    a("s_atomic_add s50, s[6:7], s52 glc")
    a("s_branch L_gate")
    a.label("L_gok")
    a("s_mov_b32 s50, 1")
    a("s_mov_b64 s[52:53], s[80:81]")
    a("s_mov_b64 s[54:55], s[82:83]")
    a("s_mov_b64 s[80:81], s[84:85]")
    a("s_mov_b64 s[82:83], s[86:87]")
    a("s_mov_b64 s[84:85], -1")
    a("s_mov_b64 s[86:87], -1")
    a("s_add_u32 s94, s35, 1")
    a("s_max_u32 s54, s54, s94")
    a("s_branch L_pvret")
    a.label("L_pdone")
    mark(a, opt, 4)
    a("s_cmp_eq_u32 s10, 1")
    a("s_cbranch_scc1 L_ptail")
    a(f"s_mul_i32 s28, s13, {8*PS}")
    a(f"s_mul_i32 s29, s11, {PS}")
    a("s_add_u32 s28, s28, s29")
    a("s_sub_u32 s32, s28, s15")
    a(f"s_add_u32 s32, s32, {PBASE}")
    a("s_lshl_b32 s52, s11, 7")
    a("s_add_u32 s52, s52, s48")
    a("s_add_u32 s52, s52, 512")
    a("s_mov_b32 s50, 0")
    a("s_atomic_add s50, s[6:7], s52 glc")
    a("s_mov_b32 s59, 0")
    a("s_mov_b32 s58, 0")
    a(f"s_mov_b32 s35, {4-LA}")
    a(f"s_waitcnt vmcnt({WU})")
    a("s_barrier")
    a("s_waitcnt vmcnt(0)")
    a.label("LT")
    for e in range(2):
        a(f"s_cmp_eq_u32 s59, {e}")
        a(f"s_cbranch_scc0 LT_n{e}")
        if e == 0:
            a("s_and_b32 s28, s50, 15")
            a("s_cmp_eq_u32 s28, 4")
        else:
            a(f"s_cmpk_eq_u32 s50, {BIAS+0x44}")
        a(f"s_cbranch_scc0 LT_poll")
        a(f"s_add_u32 m0, s30, {sl(KF+e)}")
        a("s_add_u32 s59, s59, 1")
        if e == 0: mark(a, opt, 5)
        for h in range(2):
            for j in range(4):
                if not NOL: a(f"buffer_load_dwordx4 v8, s[16:19], s32 offen offset:{j*1024} sc1 lds")
            a("s_add_u32 m0, m0, 16384")
            a("s_add_u32 s32, s32, 16384")
        a.label(f"LT_n{e}")
    a("s_branch LT_go")
    a.label("LT_poll")
    a("s_cmp_eq_u32 s50, 0")
    a("s_cbranch_scc1 LT_go")
    if opt.get("tmo"):
        a("s_add_u32 s98, s98, 1")
        a("s_cmp_gt_u32 s98, 20000")
        a(f"s_cselect_b32 s50, {BIAS+0x44}, s50")
        a("s_cbranch_scc1 LT")
    a("s_mov_b32 s50, 0")
    a("s_atomic_add s50, s[6:7], s52 glc")
    a.label("LT_go")
    a("s_cmp_lt_u32 s35, 3")
    a("s_cbranch_scc1 LT_bar")
    a("s_cmp_eq_u32 s59, 2")
    a("s_cbranch_scc1 LT_both")
    a("s_cmp_eq_u32 s35, 3")
    a("s_cselect_b32 s28, s58, 0")
    a("s_mov_b32 s58, s59")
    a("s_cmp_eq_u32 s28, 1")
    a("s_cbranch_scc1 LT_one")
    a("s_waitcnt lgkmcnt(0)")
    a("s_branch LT")
    a.label("LT_one")
    a("s_waitcnt vmcnt(0)")
    a.label("LT_bar")
    a("s_add_u32 s35, s35, 1")
    a("s_barrier")
    a("s_branch LT")
    a.label("LT_both")
    a("s_cmp_eq_u32 s35, 3")
    a("s_cbranch_scc0 LT_last")
    a("s_waitcnt vmcnt(8)")
    a("s_barrier")
    a.label("LT_last")
    a("s_waitcnt vmcnt(0)")
    a("s_barrier")
    a("s_branch L_pend")
    a.label("L_ptail")
    for n in range(LA-2, -1, -1):
        a(f"s_waitcnt vmcnt({n*8})")
        a("s_barrier")
    a("s_barrier")
    a.label("L_pend")
    stamp_end(a, opt, 1, 4, vt=100)
    if opt.get("trace"):
        a("s_cmp_lg_u32 s12, 4")
        a("s_cbranch_scc1 L_end")
        a("s_lshl_b32 s57, s2, 8")
        a(f"s_add_u32 s57, s57, {STAMP_OFF + 81920}")
        a("v_lshl_add_u32 v61, v0, 2, s57")
        a("buffer_store_dword v60, v61, s[52:55], 0 offen")
    a.label("L_end")
    a("s_endpgm")
    def rotl(L, r):
        n = len(L)
        if not ROT: return list(L)
        out = []
        for t in range(n):
            p = (t - r) & 3
            t0 = t - p
            i = (t + (3 if p == 0 else -1)) if (t0 >= 0 and t0 + 3 < n) else t
            out.append(L[i])
        assert sorted(out) == sorted(L)
        return out
    a.raw(".type L_tab,@object")
    a.label("L_tab")
    grp = lambda g: list(range(24+4*g, 28+4*g))
    seqs = {}
    for role in range(2):
        for n in range(8):
            side = (n >> 2) ^ role
            for r in range(4):
                fset = list(range(12*side, 12*side+12))
                rem = grp(n ^ 1) + grp(n ^ 2) + grp(n ^ 3)
                hs = (n >> 2) ^ 1
                fs = list(range(12*hs, 12*hs+12))
                fs = fs[6:] + fs[:6]
                if role == 0:
                    own = list(range(3*n, 3*n+3))
                    assert set(own) <= set(fset)
                    hd = sum([grp(4*(1-side)+g) for g in range(4)], [])
                    seq = own + rotl([s_ for s_ in fset if s_ not in own], r) + rotl(fs[12-EXF:], r) + rotl(hd, r) + rotl(rem[12-EXH:], r)
                else:
                    own = grp(n)
                    seq = own + rotl(fs[:12-EXF], r) + rotl(sorted(rem[:12-EXH]), r)
                assert len(seq) == (KF if role == 0 else KH)
                seqs[(role, n)] = set(seq)
                a.raw(".byte " + ",".join(map(str, seq + [0]*(64-len(seq)))))
    for n in range(8):
        assert seqs[(0, n)] | seqs[(1, n)] == set(range(56)) and not (seqs[(0, n)] & seqs[(1, n)])
    a.raw(".size L_tab, 4096")

def build(opt):
    a = Asm()
    a.raw(HDR.rstrip())
    a.raw(f"; @launch grid=(256,1,1) block=(512,1,1) lds={LDS}")
    a.raw('.amdgcn_target "amdgcn-amd-amdhsa--gfx950"')
    a.raw(".text")
    fused(a, opt)
    a.raw('.section .rodata,"a"')
    a.raw(".p2align 6")
    kd(a, KNAME, 256, 102)
    return a.text()

if __name__ == "__main__":
    opt = {}
    out = sys.argv[1]
    for kv in sys.argv[2:]:
        k, v = kv.split("=", 1)
        opt[k] = v.replace("+", " ")
    open(out, "w").write(build(opt))
```
